```python
import torch

def _softmax(x, axis=-1):
    return torch.softmax(x, dim=axis)

def _gelu(x):
    return torch.nn.functional.gelu(x, approximate='tanh')

def _silu(x):
    return torch.nn.functional.silu(x)

def _sigmoid(x):
    return torch.sigmoid(x)

def _layernorm(x, axis=-1, eps=1e-05):
    m = x.mean(dim=axis, keepdim=True)
    v = x.var(dim=axis, keepdim=True, unbiased=False)
    return (x - m) / torch.sqrt(v + eps)

def _scatter_add(tgt, idx, src, axis=0):
    return tgt.clone().index_add_(axis, idx, src)

def _segment_sum(src, seg, n):
    out = torch.zeros((n,) + src.shape[1:], dtype=src.dtype)
    return out.index_add_(0, seg, src)

def _pad(x, pw):
    flat = tuple((v for pair in reversed(pw) for v in pair))
    return torch.nn.functional.pad(x, flat)
kernel_name = 'interleave_layers__memory_aug_recurrent_mem_tr__swiglu_ffn__prompt'

def setup_inputs():

    _w = lambda a: (lambda t: t.to(torch.bfloat16) if t.is_floating_point() else t)(torch.as_tensor(a))

    def _A_setup():
        B, S, Dm = (1, 2048, 448)
        H, Dh = (16, 256)
        M, seg = (8, 32)
        seg = min(seg, S)
        S = S // seg * seg
        return {'x': _w((lambda *s: torch.randn(*s, dtype=torch.bfloat16) * 0.05)(B, S, Dm)), 'mem0': _w((lambda *s: torch.randn(*s, dtype=torch.bfloat16) * 0.8)(B, M, Dm)), 'Wq': _w((lambda *s: torch.randn(*s, dtype=torch.bfloat16) * 1.6)(Dm, H, Dh) * Dm ** (-0.5)), 'Wk': _w((lambda *s: torch.randn(*s, dtype=torch.bfloat16) * 1.6)(Dm, H, Dh) * Dm ** (-0.5)), 'Wv': _w((lambda *s: torch.randn(*s, dtype=torch.bfloat16) * 0.8)(Dm, H, Dh) * Dm ** (-0.5)), 'Wo': _w((lambda *s: torch.randn(*s, dtype=torch.bfloat16) * 0.8)(H, Dh, Dm) * (H * Dh) ** (-0.5)), 'seg_len': seg}
    _A_in = _A_setup()

    def _B_setup():
        B, S, D, F = (1, 2048, 448, 1792)
        return {'x': _w((lambda *s: torch.randn(*s, dtype=torch.bfloat16) * 0.05)(B, S, D)), 'w_gate': _w((lambda *s: torch.randn(*s, dtype=torch.bfloat16) * 0.05)(D, F)), 'w_up': _w((lambda *s: torch.randn(*s, dtype=torch.bfloat16) * 0.05)(D, F)), 'w_down': _w((lambda *s: torch.randn(*s, dtype=torch.bfloat16) * 0.05)(F, D))}
    _B_in = _B_setup()
    return {'A_x': _A_in['x'], 'A_mem0': _A_in['mem0'], 'A_Wq': _A_in['Wq'], 'A_Wk': _A_in['Wk'], 'A_Wv': _A_in['Wv'], 'A_Wo': _A_in['Wo'], 'A_seg_len': _A_in['seg_len'], 'B_x': _B_in['x'], 'B_w_gate': _B_in['w_gate'], 'B_w_up': _B_in['w_up'], 'B_w_down': _B_in['w_down']}

def reference(A_x, A_mem0, A_Wq, A_Wk, A_Wv, A_Wo, A_seg_len, B_x, B_w_gate, B_w_up, B_w_down):

    def _A_ref(x, mem0, Wq, Wk, Wv, Wo, seg_len):
        B, S, Dm = x.shape
        H, Dh = (Wq.shape[1], Wq.shape[2])
        M = mem0.shape[1]
        scale = Dh ** (-0.5)
        n_seg = S // seg_len
        L = M + seg_len
        idx = torch.arange(L)
        mask = (idx[:, None] < M) | (idx[:, None] >= idx[None, :])
        mem = mem0
        outs = []
        for s in range(n_seg):
            xs = x[:, s * seg_len:(s + 1) * seg_len, :].clone()
            h = torch.concatenate([mem, xs], axis=1)
            q = torch.einsum('btd,dhe->bhte', h, Wq)
            k = torch.einsum('btd,dhe->bhte', h, Wk)
            v = torch.einsum('btd,dhe->bhte', h, Wv)
            scores = torch.einsum('bhqe,bhke->bhqk', q, k) * scale
            scores = torch.where(mask[None, None], scores, -1000000000.0)
            p = _softmax(scores, axis=-1)
            o = torch.einsum('bhqk,bhke->bhqe', p, v)
            o = torch.einsum('bhte,hed->btd', o, Wo)
            mem = o[:, :M, :].clone()
            outs.append(o[:, M:, :])
        return torch.concatenate(outs, axis=1)

    def _B_ref(x, w_gate, w_up, w_down):
        g = _silu(x @ w_gate)
        u = x @ w_up
        return g * u @ w_down
    x = A_x
    x = x + _A_ref(_layernorm(x, axis=-1), A_mem0, A_Wq, A_Wk, A_Wv, A_Wo, A_seg_len)
    x = x + _B_ref(_layernorm(x, axis=-1), B_w_gate, B_w_up, B_w_down)
    x = x + _A_ref(_layernorm(x, axis=-1), A_mem0, A_Wq, A_Wk, A_Wv, A_Wo, A_seg_len)
    x = x + _B_ref(_layernorm(x, axis=-1), B_w_gate, B_w_up, B_w_down)
    return x
```

```python
import re

_REG = re.compile(r'^(v|a|s)(\d+)$|^(v|a|s)\[(\d+):(\d+)\]$')
def regs_of(tok):
    tok = tok.strip()
    neg = tok.startswith('-')
    if neg: tok = tok[1:]
    if tok.startswith('abs(') or tok.startswith('|'):
        tok = tok.replace('abs(', '').replace(')', '').replace('|', '')
    if tok == 'vcc': return [('s', 106), ('s', 107)]
    if tok == 'exec': return [('s', 126), ('s', 127)]
    if tok == 'm0': return [('s', 124)]
    m = _REG.match(tok)
    if not m: return []
    if m.group(1): return [(m.group(1), int(m.group(2)))]
    return [(m.group(3), i) for i in range(int(m.group(4)), int(m.group(5)) + 1)]

def v(i, n=1): return f'v{i}' if n == 1 else f'v[{i}:{i+n-1}]'
def a(i, n=1): return f'a{i}' if n == 1 else f'a[{i}:{i+n-1}]'
def s(i, n=1): return f's{i}' if n == 1 else f's[{i}:{i+n-1}]'
def u(i, n=1):
    assert (i < 256) == (i + n - 1 < 256), (i, n)
    return v(i, n) if i < 256 else a(i - 256, n)

TRANS = ('v_exp_f32', 'v_log_f32', 'v_rcp_f32', 'v_rsq_f32', 'v_sqrt_f32', 'v_sin_f32', 'v_cos_f32')

class Asm:
    def __init__(self):
        self.lines = []
        self.t = 0
        self.valu_free = 0
        self.pipe = 0
        self.valu_w = {}
        self.trans_w = {}
        self.mfma_w = {}
        self.mfma_c = {}
        self.vsgpr_w = {}
        self.store_r = {}
        self.m0_w = -100
        self.exec_vw = -100
        self.nlabel = 0
        self.ninst = 0
    def raw(self, text): self.lines.append(text)
    def comment(self, text): self.lines.append('; ' + text)
    def label(self, name): self.lines.append(name + ':')
    def newlabel(self, p='L'):
        self.nlabel += 1
        return f'{p}_{self.nlabel}'
    def flush(self, n=12):
        need = 0
        for r, (t0, p, _) in self.mfma_w.items(): need = max(need, t0 + p + 4 + 1 - self.t)
        for d, k in ((self.valu_w, 2), (self.vsgpr_w, 5), (self.store_r, 2)):
            for r, t0 in d.items(): need = max(need, t0 + k + 1 - self.t)
        if need > 0: self.nop(need)
    def nop(self, n):
        while n > 0:
            k = min(n, 16)
            self.lines.append(f's_nop {k-1}'); self.t += k; n -= k; self.ninst += 1
    def __call__(self, text):
        for ln in text.strip().split('\n'):
            ln = ln.strip()
            if not ln: continue
            if ln.startswith(';'): self.lines.append(ln); continue
            if ln.endswith(':'): self.lines.append(ln); continue
            self.inst(ln)
    def inst(self, ln):
        code = ln.split(';')[0].strip()
        parts = code.split(None, 1)
        mn = parts[0]
        rest = parts[1] if len(parts) > 1 else ''
        ops = [o.strip() for o in rest.split(',')] if rest else []
        mods = ''
        if ops:
            last = ops[-1].split(None, 1)
            ops2 = []; done = False
            for o in ops:
                if done: mods += ',' + o; continue
                sp = o.split(None, 1)
                ops2.append(sp[0])
                if len(sp) > 1: mods += ' ' + sp[1]; done = True
            ops = ops2
        R = [regs_of(o) for o in ops]
        flat = lambda L: [x for l in L for x in l]
        is_mfma = mn.startswith('v_mfma') or mn.startswith('v_smfmac')
        is_valu = mn.startswith('v_') and not is_mfma
        is_vmem = mn.startswith('buffer_') or mn.startswith('global_')
        is_ds = mn.startswith('ds_')
        rd, wr = [], []
        if is_mfma:
            wr = R[0]; rd = flat(R[1:3])
            if mn.startswith('v_smfmac'): csrc = R[0]; rd = rd + R[3]
            else: csrc = R[3]
        elif is_valu:
            if mn.startswith('v_permlane') and 'swap' in mn: wr = R[0] + R[1]; rd = wr
            elif mn.startswith('v_cmp'): wr = R[0]; rd = flat(R[1:])
            elif '_co_' in mn: wr = R[0] + R[1]; rd = flat(R[2:])
            else:
                wr = R[0]; rd = flat(R[1:])
                if mn.startswith(('v_fmac', 'v_dot2c', 'v_pk_fmac')) or 'dpp' in mn: rd = rd + R[0]
                if mn.startswith('v_cndmask') and len(ops) == 3: rd = rd + regs_of('vcc')
        elif is_vmem:
            if 'load' in mn and ' lds' not in (' ' + mods): wr = R[0]; rd = flat(R[1:])
            elif 'atomic' in mn and 'sc0' in mods: wr = R[0]; rd = flat(R)
            else: rd = flat(R)
        elif is_ds:
            if mn.startswith(('ds_read', 'ds_add_rtn', 'ds_bpermute', 'ds_permute', 'ds_swizzle')): wr = R[0]; rd = flat(R[1:])
            else: rd = flat(R)
        else:
            if mn.startswith(('s_cmp', 's_cbranch', 's_branch', 's_waitcnt', 's_barrier', 's_nop', 's_endpgm', 's_sleep', 's_setprio', 's_bitcmp')): rd = flat(R)
            else: wr = R[0] if R else []; rd = flat(R[1:])
        if is_valu: self.t = max(self.t, self.valu_free)
        need = self.t
        def req(t0, k):
            nonlocal need
            need = max(need, t0 + k + 1)
        vec = is_valu or is_vmem or is_ds
        if is_mfma:
            passes = 8 if '32x32' in mn else 4
            key = (tuple(wr), passes)
            for r in rd + csrc:
                if r in self.valu_w: req(self.valu_w[r], 2)
            for r in rd:
                if r in self.mfma_w: req(self.mfma_w[r][0], self.mfma_w[r][1] + 4)
            for r in csrc:
                if r in self.mfma_w and self.mfma_w[r][2] != (tuple(csrc), passes, mn):
                    req(self.mfma_w[r][0], self.mfma_w[r][1] + 2)
            for r in wr:
                if r in self.mfma_w and r not in csrc: req(self.mfma_w[r][0], self.mfma_w[r][1] + 2)
            req(self.exec_vw, 4)
        if vec:
            xm = 2 if ('dpp' in mn or mn.startswith('v_permlane')) else 1
            for r in rd + wr:
                if r in self.mfma_w: req(self.mfma_w[r][0], self.mfma_w[r][1] + 4 + xm)
        if is_valu:
            for r in wr:
                if r in self.mfma_c: req(self.mfma_c[r][0], self.mfma_c[r][1] - 1)
                if r in self.store_r: req(self.store_r[r], 2)
            if not mn.startswith(TRANS):
                for r in rd:
                    if r in self.trans_w: req(self.trans_w[r], 1)
            if 'dpp' in mn or mn.startswith('v_permlane'):
                for r in rd:
                    if r in self.valu_w: req(self.valu_w[r], 2)
                req(self.exec_vw, 5)
            if mn.startswith(('v_readfirstlane', 'v_readlane')):
                for r in rd:
                    if r in self.valu_w: req(self.valu_w[r], 1)
                    if r in self.vsgpr_w: req(self.vsgpr_w[r], 4)
                req(self.exec_vw, 4)
            for r in rd:
                if r[0] == 's' and r in self.vsgpr_w: req(self.vsgpr_w[r], 2)
        if is_vmem or is_ds:
            for r in wr:
                if r in self.store_r: req(self.store_r[r], 1)
        if is_vmem:
            for r in rd:
                if r[0] == 's' and r in self.vsgpr_w: req(self.vsgpr_w[r], 5)
            if ' lds' in (' ' + mods): req(self.m0_w, 1)
        if not vec and not is_mfma:
            for r in rd:
                if r in self.vsgpr_w: req(self.vsgpr_w[r], 1)
            if mn.startswith('s_cbranch_vcc') and ('s', 106) in self.vsgpr_w: req(self.vsgpr_w[('s', 106)], 1)
        if need > self.t: self.nop(need - self.t)
        if is_mfma:
            self.t = max(self.t, self.pipe)
            self.pipe = self.t + passes
            self.valu_free = self.t + (3 if mn.startswith('v_smfmac') else 2)
            for r in wr:
                self.mfma_w[r] = (self.t, passes, (tuple(wr), passes, mn)); self.valu_w.pop(r, None)
            for r in csrc: self.mfma_c[r] = (self.t, passes)
        elif is_valu:
            for r in wr:
                if r[0] == 's':
                    self.vsgpr_w[r] = self.t
                    if r[1] in (126, 127): self.exec_vw = self.t
                else:
                    self.valu_w[r] = self.t; self.mfma_w.pop(r, None)
                    if mn.startswith(TRANS): self.trans_w[r] = self.t
                    else: self.trans_w.pop(r, None)
            if mn.startswith('v_cmpx'): self.exec_vw = self.t
        elif is_vmem:
            if 'store' in mn and ('x4' in mn or 'x3' in mn):
                for r in R[0]: self.store_r[r] = self.t
        elif not is_ds:
            for r in wr:
                self.vsgpr_w.pop(r, None)
                if r == ('s', 124): self.m0_w = self.t
        if mn == 's_nop': self.t += int(ops[0]) + 1
        else: self.t += 1
        self.lines.append(ln); self.ninst += 1
    def would_pad(self, text):
        import copy
        keys = ('t', 'pipe', 'valu_free', 'valu_w', 'trans_w', 'mfma_w', 'mfma_c', 'vsgpr_w', 'store_r', 'm0_w', 'exec_vw', 'ninst')
        save = {k: copy.copy(getattr(self, k)) for k in keys}; n = len(self.lines)
        self(text)
        pad = sum(l.startswith('s_nop') for l in self.lines[n:]) > text.count('s_nop')
        del self.lines[n:]
        for k, x in save.items(): setattr(self, k, x)
        return pad
    def text(self): return '\n'.join(self.lines) + '\n'

def kernel_desc(name, vgpr=512, accum=256, sgpr=102):
    return f'''.p2align 6
.amdhsa_kernel {name}
  .amdhsa_next_free_vgpr {vgpr}
  .amdhsa_next_free_sgpr {sgpr}
  .amdhsa_accum_offset {accum}
  .amdhsa_group_segment_fixed_size 0
  .amdhsa_kernarg_size 112
  .amdhsa_user_sgpr_count 2
  .amdhsa_user_sgpr_kernarg_segment_ptr 1
  .amdhsa_system_sgpr_workgroup_id_x 1
  .amdhsa_float_denorm_mode_32 3
  .amdhsa_float_denorm_mode_16_64 3
.end_amdhsa_kernel
'''

def slot_cost(item):
    c = 0; nv = 0
    for ln in item.split('\n'):
        ln = ln.strip()
        if not ln or ln.endswith(':'): continue
        if ln.startswith(TRANS) or ln.startswith('v_permlane'): c += 2; nv += 2
        elif ln.startswith('v_'): c += 1; nv += 1
        elif ln.startswith('ds_'): c += 2
        else: c += 1
    return c, nv

class Sched:
    def __init__(self, A, streams):
        self.A = A; self.g = 0; self.vm = []; self.ds = []; self.when = {}
        self.st = [[(x if isinstance(x, tuple) else (0, x)) for x in s] for s in streams]
    def after(self, tag, log=None):
        log = self.vm if log is None else log
        return len(log) if tag == '' else len(log) - 1 - max(i for i, t in enumerate(log) if t == tag)
    def emit(self, it):
        x = it[1]
        if x.startswith('W:'): x = f's_waitcnt vmcnt({self.after(x[2:])})'
        elif x.startswith('L:'): x = f's_waitcnt lgkmcnt({min(15, self.after(x[2:], self.ds))})'
        self.A(x)
        tag = it[2] if len(it) > 2 else None
        self.when[tag] = self.g
        self.vm += [tag]*x.count('buffer_'); self.ds += [tag]*x.count('ds_')
    def gap(self, used=0):
        free = 3 - used; vfree = 2; nm = 0
        for phase in (0, 1):
            for si, s in enumerate(self.st):
                while s and s[0][0] <= self.g:
                    x = s[0][1]
                    b = self.st[-1]
                    if si == 1 and free < 3 and b and b[0][0] <= self.g: break
                    if x.startswith('+'):
                        s.pop(0)
                        if s: s[0] = (max(s[0][0], self.g + int(x[1:])),) + tuple(s[0][1:])
                        continue
                    c, nv = slot_cost(x)
                    if (nv > 0) != (phase == 1): break
                    if c > free and not (free == 3 and c > 3): break
                    if nv > vfree: break
                    if 'buffer_' in x and nm: break
                    if x[:2] not in ('W:', 'L:') and self.A.would_pad(x): break
                    self.emit(s.pop(0)); free -= c; vfree -= nv; nm += 'buffer_' in x
        self.g += 1
    def drain(self):
        for s in self.st:
            while s:
                it = s.pop(0)
                if not it[1].startswith('+'): self.emit(it)
    def left(self): return [len(s) for s in self.st]
```

```python
import re

_REG = re.compile(r'^(v|a|s)(\d+)$|^(v|a|s)\[(\d+):(\d+)\]$')
def regs_of(tok):
    tok = tok.strip()
    neg = tok.startswith('-')
    if neg: tok = tok[1:]
    if tok.startswith('abs(') or tok.startswith('|'):
        tok = tok.replace('abs(', '').replace(')', '').replace('|', '')
    if tok == 'vcc': return [('s', 106), ('s', 107)]
    if tok == 'exec': return [('s', 126), ('s', 127)]
    if tok == 'm0': return [('s', 124)]
    m = _REG.match(tok)
    if not m: return []
    if m.group(1): return [(m.group(1), int(m.group(2)))]
    return [(m.group(3), i) for i in range(int(m.group(4)), int(m.group(5)) + 1)]

def v(i, n=1): return f'v{i}' if n == 1 else f'v[{i}:{i+n-1}]'
def a(i, n=1): return f'a{i}' if n == 1 else f'a[{i}:{i+n-1}]'
def s(i, n=1): return f's{i}' if n == 1 else f's[{i}:{i+n-1}]'
def u(i, n=1):
    assert (i < 256) == (i + n - 1 < 256), (i, n)
    return v(i, n) if i < 256 else a(i - 256, n)

TRANS = ('v_exp_f32', 'v_log_f32', 'v_rcp_f32', 'v_rsq_f32', 'v_sqrt_f32', 'v_sin_f32', 'v_cos_f32')

class Asm:
    def __init__(self):
        self.lines = []
        self.t = 0
        self.valu_free = 0
        self.pipe = 0
        self.valu_w = {}
        self.trans_w = {}
        self.mfma_w = {}
        self.mfma_c = {}
        self.vsgpr_w = {}
        self.store_r = {}
        self.m0_w = -100
        self.exec_vw = -100
        self.nlabel = 0
        self.ninst = 0
    def raw(self, text): self.lines.append(text)
    def comment(self, text): self.lines.append('; ' + text)
    def label(self, name): self.lines.append(name + ':')
    def newlabel(self, p='L'):
        self.nlabel += 1
        return f'{p}_{self.nlabel}'
    def flush(self, n=12):
        need = 0
        for r, (t0, p, _) in self.mfma_w.items(): need = max(need, t0 + p + 4 + 1 - self.t)
        for d, k in ((self.valu_w, 2), (self.vsgpr_w, 5), (self.store_r, 2)):
            for r, t0 in d.items(): need = max(need, t0 + k + 1 - self.t)
        if need > 0: self.nop(need)
    def nop(self, n):
        while n > 0:
            k = min(n, 16)
            self.lines.append(f's_nop {k-1}'); self.t += k; n -= k; self.ninst += 1
    def __call__(self, text):
        for ln in text.strip().split('\n'):
            ln = ln.strip()
            if not ln: continue
            if ln.startswith(';'): self.lines.append(ln); continue
            if ln.endswith(':'): self.lines.append(ln); continue
            self.inst(ln)
    def inst(self, ln):
        code = ln.split(';')[0].strip()
        parts = code.split(None, 1)
        mn = parts[0]
        rest = parts[1] if len(parts) > 1 else ''
        ops = [o.strip() for o in rest.split(',')] if rest else []
        mods = ''
        if ops:
            last = ops[-1].split(None, 1)
            ops2 = []; done = False
            for o in ops:
                if done: mods += ',' + o; continue
                sp = o.split(None, 1)
                ops2.append(sp[0])
                if len(sp) > 1: mods += ' ' + sp[1]; done = True
            ops = ops2
        R = [regs_of(o) for o in ops]
        flat = lambda L: [x for l in L for x in l]
        is_mfma = mn.startswith('v_mfma') or mn.startswith('v_smfmac')
        is_valu = mn.startswith('v_') and not is_mfma
        is_vmem = mn.startswith('buffer_') or mn.startswith('global_')
        is_ds = mn.startswith('ds_')
        rd, wr = [], []
        if is_mfma:
            wr = R[0]; rd = flat(R[1:3])
            if mn.startswith('v_smfmac'): csrc = R[0]; rd = rd + R[3]
            else: csrc = R[3]
        elif is_valu:
            if mn.startswith('v_permlane') and 'swap' in mn: wr = R[0] + R[1]; rd = wr
            elif mn.startswith('v_cmp'): wr = R[0]; rd = flat(R[1:])
            elif '_co_' in mn: wr = R[0] + R[1]; rd = flat(R[2:])
            else:
                wr = R[0]; rd = flat(R[1:])
                if mn.startswith(('v_fmac', 'v_dot2c', 'v_pk_fmac')) or 'dpp' in mn: rd = rd + R[0]
                if mn.startswith('v_cndmask') and len(ops) == 3: rd = rd + regs_of('vcc')
        elif is_vmem:
            if 'load' in mn and ' lds' not in (' ' + mods): wr = R[0]; rd = flat(R[1:])
            elif 'atomic' in mn and 'sc0' in mods: wr = R[0]; rd = flat(R)
            else: rd = flat(R)
        elif is_ds:
            if mn.startswith(('ds_read', 'ds_bpermute', 'ds_permute', 'ds_swizzle')): wr = R[0]; rd = flat(R[1:])
            else: rd = flat(R)
        else:
            if mn.startswith(('s_cmp', 's_cbranch', 's_branch', 's_waitcnt', 's_barrier', 's_nop', 's_endpgm', 's_sleep', 's_setprio', 's_bitcmp')): rd = flat(R)
            else: wr = R[0] if R else []; rd = flat(R[1:])
        if is_valu: self.t = max(self.t, self.valu_free)
        need = self.t
        def req(t0, k):
            nonlocal need
            need = max(need, t0 + k + 1)
        vec = is_valu or is_vmem or is_ds
        if is_mfma:
            passes = 8 if '32x32' in mn else 4
            key = (tuple(wr), passes)
            for r in rd + csrc:
                if r in self.valu_w: req(self.valu_w[r], 2)
            for r in rd:
                if r in self.mfma_w: req(self.mfma_w[r][0], self.mfma_w[r][1] + 4)
            for r in csrc:
                if r in self.mfma_w and self.mfma_w[r][2] != (tuple(csrc), passes, mn):
                    req(self.mfma_w[r][0], self.mfma_w[r][1] + 2)
            for r in wr:
                if r in self.mfma_w and r not in csrc: req(self.mfma_w[r][0], self.mfma_w[r][1] + 2)
            req(self.exec_vw, 4)
        if vec:
            xm = 2 if ('dpp' in mn or mn.startswith('v_permlane')) else 1
            for r in rd + wr:
                if r in self.mfma_w: req(self.mfma_w[r][0], self.mfma_w[r][1] + 4 + xm)
        if is_valu:
            for r in wr:
                if r in self.mfma_c: req(self.mfma_c[r][0], self.mfma_c[r][1] - 1)
                if r in self.store_r: req(self.store_r[r], 2)
            if not mn.startswith(TRANS):
                for r in rd:
                    if r in self.trans_w: req(self.trans_w[r], 1)
            if 'dpp' in mn or mn.startswith('v_permlane'):
                for r in rd:
                    if r in self.valu_w: req(self.valu_w[r], 2)
                req(self.exec_vw, 5)
            if mn.startswith(('v_readfirstlane', 'v_readlane')):
                for r in rd:
                    if r in self.valu_w: req(self.valu_w[r], 1)
                    if r in self.vsgpr_w: req(self.vsgpr_w[r], 4)
                req(self.exec_vw, 4)
            for r in rd:
                if r[0] == 's' and r in self.vsgpr_w: req(self.vsgpr_w[r], 2)
        if is_vmem or is_ds:
            for r in wr:
                if r in self.store_r: req(self.store_r[r], 1)
        if is_vmem:
            for r in rd:
                if r[0] == 's' and r in self.vsgpr_w: req(self.vsgpr_w[r], 5)
            if ' lds' in (' ' + mods): req(self.m0_w, 1)
        if not vec and not is_mfma:
            for r in rd:
                if r in self.vsgpr_w: req(self.vsgpr_w[r], 1)
            if mn.startswith('s_cbranch_vcc') and ('s', 106) in self.vsgpr_w: req(self.vsgpr_w[('s', 106)], 1)
        if need > self.t: self.nop(need - self.t)
        if is_mfma:
            self.t = max(self.t, self.pipe)
            self.pipe = self.t + passes
            self.valu_free = self.t + (3 if mn.startswith('v_smfmac') else 2)
            for r in wr:
                self.mfma_w[r] = (self.t, passes, (tuple(wr), passes, mn)); self.valu_w.pop(r, None)
            for r in csrc: self.mfma_c[r] = (self.t, passes)
        elif is_valu:
            for r in wr:
                if r[0] == 's':
                    self.vsgpr_w[r] = self.t
                    if r[1] in (126, 127): self.exec_vw = self.t
                else:
                    self.valu_w[r] = self.t; self.mfma_w.pop(r, None)
                    if mn.startswith(TRANS): self.trans_w[r] = self.t
                    else: self.trans_w.pop(r, None)
            if mn.startswith('v_cmpx'): self.exec_vw = self.t
        elif is_vmem:
            if 'store' in mn and ('x4' in mn or 'x3' in mn):
                for r in R[0]: self.store_r[r] = self.t
        elif not is_ds:
            for r in wr:
                self.vsgpr_w.pop(r, None)
                if r == ('s', 124): self.m0_w = self.t
        if mn == 's_nop': self.t += int(ops[0]) + 1
        else: self.t += 1
        self.lines.append(ln); self.ninst += 1
    def text(self): return '\n'.join(self.lines) + '\n'

def kernel_desc(name, vgpr=512, accum=256, sgpr=102):
    return f'''.p2align 6
.amdhsa_kernel {name}
  .amdhsa_next_free_vgpr {vgpr}
  .amdhsa_next_free_sgpr {sgpr}
  .amdhsa_accum_offset {accum}
  .amdhsa_group_segment_fixed_size 0
  .amdhsa_kernarg_size 112
  .amdhsa_user_sgpr_count 2
  .amdhsa_user_sgpr_kernarg_segment_ptr 1
  .amdhsa_system_sgpr_workgroup_id_x 1
  .amdhsa_float_denorm_mode_32 3
  .amdhsa_float_denorm_mode_16_64 3
.end_amdhsa_kernel
'''
```

```python
KB = 1024
NSEG = 64
WA_OFF = 0
WB_OFF = WA_OFF + 16*28*14*KB
SEGX = 28*KB
X_OFF = [WB_OFF + 16*28*14*KB + i*NSEG*SEGX for i in range(4)]
XS_OFF = [X_OFF[3] + (i+1)*NSEG*SEGX for i in range(2)]
SEGY = 28*16*KB
Y_OFF = [XS_OFF[1] + NSEG*SEGX + i*NSEG*SEGY for i in range(2)]
SEGZ = 28*8*KB
ZG_OFF = [Y_OFF[1] + NSEG*SEGY + i*NSEG*SEGZ for i in range(2)]
SEGP = 48*KB
PX_OFF = [ZG_OFF[1] + NSEG*SEGZ + i*NSEG*SEGP for i in range(2)]
SEGH = 112*KB
H_OFF = [PX_OFF[1] + NSEG*SEGP + i*NSEG*SEGH for i in range(2)]
ARM_OFF = H_OFF[1] + NSEG*SEGH
R_SP, R_P = 0, 8*KB
SLOT = 20*KB
NSLOT = 8
RING_OFF = [ARM_OFF + i*NSLOT*SLOT for i in range(2)]
SEGM = 7*KB
MEMG_OFF = [RING_OFF[1] + NSLOT*SLOT + i*NSEG*SEGM for i in range(2)]
ARM_END = MEMG_OFF[1] + NSEG*SEGM
FLAG_OFF = ARM_END
F_Y, F_XS, F_Z, F_P, F_X1, F_H, F_X2 = range(7)
NKIND = 8
FLK = 8192
def flag_off(kind, layer): return FLAG_OFF + (kind*2 + layer)*FLK
PROG_OFF = [flag_off(7, 0), flag_off(7, 1)]
DUMMY_OFF = flag_off(7, 0) + 4096
FLAG_END = FLAG_OFF + NKIND*2*FLK
SEGS = 2*16*16*8
ST_OFF = [FLAG_END + i*NSEG*SEGS for i in range(4)]
PROF_OFF = ST_OFF[3] + NSEG*SEGS
WS_BYTES = 268435456
assert PROF_OFF + (16<<20) < WS_BYTES
def jmap(tile, i): return 32*(tile>>1) + 8*(i>>2) + 4*(tile&1) + (i&3)
if __name__ == '__main__':
    print(hex(PROF_OFF), PROF_OFF/1e6, ARM_END-ARM_OFF, FLAG_END-FLAG_OFF)
```

```python
from asmgen import *
from layout import *

WS = 's[8:11]'; DBG = 's[12:15]'
sWAVE, sGRP, sIDX, sPURE, sTMO, sSTEP = 32, 33, 34, 35, 36, 37
sLAY = 38
sPROF = 39
TMO = 1 << 22
DEF = dict(oy0=4, oyp=3, lsleep=1, yga=45, ygp=105, ygd=152, ygx=110, tga=45, tgx=112, tgp=108, tgd=150, fga=44, fgp=28, fgd=70, psleep=2, msleep=2, NH=21, oD=4, zfirst=0, nlong=5, dbeh=100, ypace=3, nbeh=0, g0=2, pace=4, nbar=9, sigP=1, dP=0, dM=0, dMB=0, sA=0, sB=0, ncan=6, cgap=9)
CFG = dict(DEF)

def wunit(n):
    return (256 + 8*n) if n < 32 else (120 + 8*(n-32))

def timeout_check(A, code):
    A(f's_sub_u32 s{sTMO}, s{sTMO}, 1')
    A(f's_cbranch_scc1 L_timeout_{code}')

def emit_timeouts(A, codes):
    for c in codes:
        A.label(f'L_timeout_{c}')
        A(f's_mov_b32 s40, {c}')
        A('s_branch L_timeout')
    A.label('L_timeout')
    A(f'''s_mov_b64 exec, 1
    s_lshl_b32 s41, s{sGRP}, 8
    s_or_b32 s40, s40, s41
    s_lshl_b32 s41, s{sIDX}, 16
    s_or_b32 s40, s40, s41
    s_lshl_b32 s41, s{sSTEP}, 24
    s_or_b32 s40, s40, s41
    s_and_b32 s41, s40, 31
    s_lshl_b32 s41, s41, 2
    v_mov_b32 v1, s40
    v_mov_b32 v2, s41
    buffer_store_dword v1, v2, {DBG}, 0 offen offset:64 sc1
    s_waitcnt vmcnt(0)
    s_endpgm''')

class Late:
    def __init__(self): self.f = []
    def add(self, fn): self.f.append(fn)
    def emit(self):
        while self.f: self.f.pop(0)()

def st2(A, late, inst, cmp=True):
    l1 = A.newlabel('Lsi'); l2 = A.newlabel('Lsj')
    if cmp: A(f's_cmp_eq_u32 s{sPURE}, 0')
    A(f's_cbranch_scc1 {l1}')
    for i in inst: A(i)
    A.label(l2)
    def slow():
        A.label(l1)
        for i in inst: A(i + ' sc1')
        A(f's_branch {l2}')
    late.add(slow)

def st2s(A, late, inst):
    l1 = A.newlabel('Lsi'); l2 = A.newlabel('Lsj')
    def slow():
        A.label(l1); A(inst + ' sc1'); A(f's_branch {l2}')
    late.add(slow)
    return f's_cmp_eq_u32 s{sPURE}, 0\ns_cbranch_scc1 {l1}\n{inst}\n{l2}:'

def backoff(A, cycles):
    n = cycles // 64
    if n > 0: A(f's_sleep {n}')
    r = (cycles % 64) // 4
    if r > 0: A.nop(r)

def flag_addr(A, dst, kind, sseg, slay=sLAY):
    A(f's_lshr_b32 s54, s{sseg}, 5')
    A(f's_lshl_b32 s54, s54, 12')
    A(f's_and_b32 s55, s{sseg}, 31')
    A(f's_lshl2_add_u32 s54, s55, s54')
    A(f's_lshl_b32 s55, s{slay}, 13')
    A(f's_add_u32 s54, s54, s55')
    A(f's_add_u32 s{dst}, s54, {flag_off(kind, 0)}')

MEM, ACC = 16, 44
vL16, vIDX, vPGA, vMW = 1, 2, 3, 4
vMR = 5
LMB = 0
sU0, sU1, sRING, sSP, sPG = 78, 79, 56, 57, 58

def stamp(A, prof, k, mode=0):
    m = CFG.get('pmode', 0)
    if prof and (mode == m or (mode == 0 and k in (0, 7))): A(f's_memtime s[{80+2*k}:{81+2*k}]')

def prof_init(A, prof, addidx=0):
    if not prof: return
    l = A.newlabel('Lpf')
    A(f'''s_lshl_b32 s{sPROF}, s{sGRP}, 5
    s_add_u32 s{sPROF}, s{sPROF}, s{sIDX}
    s_add_u32 s{sPROF}, s{sPROF}, {addidx}
    s_lshl_b32 s{sPROF}, s{sPROF}, 2
    s_add_u32 s{sPROF}, s{sPROF}, s{sWAVE}
    s_mul_i32 s{sPROF}, s{sPROF}, 8192
    s_add_u32 s{sPROF}, s{sPROF}, {PROF_OFF}
    s_memrealtime s[84:85]
    s_waitcnt lgkmcnt(0)
    {l}:
    s_memrealtime s[80:81]
    s_memtime s[82:83]
    s_waitcnt lgkmcnt(0)
    s_cmp_eq_u32 s80, s84
    s_cbranch_scc1 {l}''')
    prof_store(A, prof, 2)

def prof_store(A, prof, n):
    if not prof: return
    A('s_waitcnt lgkmcnt(0)')
    for k in range(n): A(f'v_writelane_b32 v40, s{80+2*k}, {k}')
    A('v_writelane_b32 v40, s97, 10'); A('v_writelane_b32 v40, s99, 11')
    A(f'v_lshrrev_b32 v41, 2, v{vL16}')
    A('s_mov_b64 exec, 0xffff')
    A(f'buffer_store_dword v40, v41, {WS}, s{sPROF} offen')
    A('s_mov_b64 exec, -1')
    A(f's_add_u32 s{sPROF}, s{sPROF}, 64')

SIGP, SIGM, SIGR = 1024, 1152, 1408
class Canary:
    def __init__(self, A, late, regs, vaddr, ssig, sneed, code, cnt=None):
        self.A, self.late, self.regs, self.va, self.ss, self.sn, self.code, self.cnt = A, late, regs, vaddr, ssig, sneed, code, cnt
        self.fl = []; self.k = 0
    def ld(self, r): return f'buffer_load_dword v{r}, v{self.va}, {WS}, s{self.ss} offen sc1'
    def issue(self):
        if self.k < len(self.regs):
            r = self.regs[self.k]; self.k += 1
            self.A(self.ld(r)); self.fl.append(r)
    def other(self, n=1): self.fl += [None]*n
    def wait(self, skip=0):
        A = self.A; ok = A.newlabel('Lco'); lo = A.newlabel('Lcl'); more = A.newlabel('Lcm')
        regs = [r for r in self.fl if r is not None][skip:]
        fl = list(self.fl)
        r = regs[0]; n = len(fl) - 1 - fl.index(r)
        A(f's_waitcnt vmcnt({n})')
        A(f'v_cmp_gt_u32 vcc, s{self.sn}, v{r}')
        A(f's_cbranch_vccnz {more}')
        A.label(ok)
        def slow():
            A.label(more)
            f2 = fl[fl.index(r)+1:]
            A(self.ld(r)); f2.append(r)
            for q in regs[1:]:
                i = f2.index(q)
                if self.cnt: A(f's_add_u32 s{self.cnt}, s{self.cnt}, 1')
                A(f's_waitcnt vmcnt({len(f2)-1-i})')
                A(f'v_cmp_gt_u32 vcc, s{self.sn}, v{q}')
                A(f's_cbranch_vccz {ok}')
                f2 = f2[i+1:]; A(self.ld(q)); f2.append(q)
            A.label(lo)
            timeout_check(A, self.code)
            for q in regs:
                if self.cnt: A(f's_add_u32 s{self.cnt}, s{self.cnt}, 1')
                A(f's_waitcnt vmcnt({len(regs)-1})')
                A(f'v_cmp_gt_u32 vcc, s{self.sn}, v{q}')
                A(f's_cbranch_vccz {ok}')
                A(self.ld(q))
            A(f's_branch {lo}')
        self.late.add(slow)

def canary_addr(A, vCM, t):
    A(f"""v_and_b32 v{t}, 15, v0
    v_cmp_gt_u32 vcc, 14, v{t}
    v_lshlrev_b32 v{t}, 2, v{t}
    v_cndmask_b32 v{vCM}, 0, v{t}, vcc""")

def chain_init(A, tile_base):
    A(f"""v_and_b32 v12, 63, v0
    v_lshlrev_b32 v{vL16}, 4, v12
    v_and_b32 v4, 8, v12
    v_cmp_eq_u32 vcc, 0, v4
    v_mov_b32 v4, 0xeeee
    v_mov_b32 v5, 0x4444
    v_cndmask_b32 v{vIDX}, v4, v5, vcc
    v_and_b32 v{vPGA}, 7, v12
    v_lshlrev_b32 v{vPGA}, 2, v{vPGA}
    s_mov_b32 s{sSTEP}, 0""")
    for lu in range(7):
        A(f"""s_lshl_b32 s{48+lu}, s{sWAVE}, 1
        s_add_u32 s{48+lu}, s{48+lu}, {lu}
        s_sub_u32 s40, s{48+lu}, 7
        s_cmp_ge_u32 s{48+lu}, 7
        s_cselect_b32 s{48+lu}, s40, s{48+lu}
        s_lshl_b32 s{48+lu}, s{48+lu}, 10""")
    A(f's_mov_b32 s{sU0}, s48'); A(f's_mov_b32 s{sU1}, s49')
    A(f'v_add_u32 v{vMW}, s48, v{vL16}')
    for lu in range(2, 7): A(f'v_add_u32 v{vMR+lu-2}, s{48+lu}, v{vL16}')
    for slot in range(7):
        sb, c = tile_base(slot)
        for lu in range(7):
            A(f's_lshl_b32 s40, s{48+lu}, 1')
            A(f's_add_u32 s40, s40, s{sb}')
            A(f's_add_u32 s40, s40, {c}')
            r = wunit(slot*7 + lu)
            A(f'buffer_load_dwordx4 {u(r,4)}, v{vL16}, {WS}, s40 offen')
            A(f'buffer_load_dwordx4 {u(r+4,4)}, v{vL16}, {WS}, s40 offen offset:1024')
        if slot >= 3: A('s_waitcnt vmcnt(42)')

def chain_bases(A):
    A(f"""s_mov_b32 s{sLAY}, s{sGRP}
    s_mul_i32 s{sRING}, s{sLAY}, {RING_OFF[1]-RING_OFF[0]}
    s_add_u32 s{sRING}, s{sRING}, {RING_OFF[0]}
    s_lshl_b32 s{sPG}, s{sLAY}, 13
    s_add_u32 s{sPG}, s{sPG}, {PROG_OFF[0]}""")

def slot_addr(dst, sstep, add):
    return [f's_add_u32 s45, s{sstep}, {add}', f's_and_b32 s45, s45, {NSLOT-1}', f's_mul_i32 s{dst}, s45, {SLOT}', f's_add_u32 s{dst}, s{dst}, s{sRING}']

def wait_ready(A, code, first=True):
    l = A.newlabel('Lrd'); l2 = A.newlabel('Lrd')
    if not first: A(f's_branch {l2}')
    A.label(l)
    A(f'buffer_load_dword v15, v{vPGA}, {WS}, s{sPG} offen sc1')
    timeout_check(A, code)
    A('s_waitcnt vmcnt(0)')
    A.label(l2)
    A(f'v_cmp_ge_u32 vcc, s{sSTEP}, v15')
    A(f's_cbranch_vccnz {l}')

def zero_acc(A, n):
    for i in range(0, n, 2): A(f'v_mov_b64 {v(ACC+i,2)}, 0')

def g1(A, late, behind, after_bar, tail, code, prof, paced=(), nbar=9, extra=None, dbeh=None):
    T = 12
    lp = A.newlabel('Lpoll'); lre = A.newlabel('Lre')
    def polls():
        A(f'buffer_load_dwordx4 {v(MEM,4)}, v{vL16}, {WS}, s40 offen sc1')
        A(f'buffer_load_dwordx4 {v(MEM+4,4)}, v{vL16}, {WS}, s41 offen sc1')
    polls()
    if behind: backoff(A, CFG['dbeh'] if dbeh is None else dbeh)
    for x in behind: A(x)
    nb = sum(x.count('buffer_') for x in behind)
    if prof: A('s_mov_b32 s98, 0')
    A(f's_waitcnt vmcnt({nb})')
    A.label(lp)
    order = [(sl, lu) for lu in range(3) for sl in range(7)] + [(sl, lu) for sl in range(7) for lu in range(3, 7)]
    gaps = [[] for _ in order]
    chk = [f'v_max3_u32 v{T}, v{MEM}, v{MEM+1}, v{MEM+2}', f'v_max3_u32 v{T}, v{T}, v{MEM+3}, v{MEM+4}',
           f'v_max3_u32 v{T}, v{T}, v{MEM+5}, v{MEM+6}', f'v_max_u32 v{T}, v{T}, v{MEM+7}', f'v_cmp_eq_u32 vcc, -1, v{T}']
    gaps[0].append(f'ds_write_b128 v{vMW}, {v(MEM,4)} offset:{LMB}')
    gaps[1].append(f'ds_write_b128 v{vMW}, {v(MEM+4,4)} offset:{LMB+1024}')
    for i, x in enumerate(chk): gaps[2+i].append(x)
    rd = [f'ds_read_b128 {v(MEM+4*lu,4)}, v{vMR+lu-2} offset:{LMB}' for lu in range(2, 7)]
    st1 = [f's_memtime s[82:83]'] if prof and CFG.get('pmode', 0) in (0, 1) else []
    gaps[nbar-1] += [f's_cbranch_vccnz {lre}', 's_waitcnt lgkmcnt(0)', 's_barrier'] + st1 + rd[:2]
    g = nbar
    for x in rd[2:] + list(after_bar): gaps[g].append(x); g += 1
    assert g <= 22, g
    nds = lambda lo, hi: sum(1 for k in range(lo, hi) for x in gaps[k] if x.startswith('ds_'))
    gaps[13].append(f's_waitcnt lgkmcnt({nds(nbar-1, 14)-1})')
    gaps[20].append(f's_waitcnt lgkmcnt({max(0, nds(nbar-1, 21)-5)})')
    if extra: extra(gaps)
    rest = []
    for sl in range(7):
        g = 21 + 4*(sl+1) + 1
        for x in tail(sl):
            while g < 49 and gaps[g]: g += 1
            if g < 49: gaps[g].append(x)
            else: rest.append(x)
    paced = list(paced); nxt = max(CFG['g0'], 2)
    for g in range(2, 49):
        if paced and g >= nxt and not any(y.startswith(('ds_write', 's_c') + (('v_',) if g > 20 else ())) for y in gaps[g]):
            gaps[g].insert(0, paced.pop(0)); nxt = g + CFG['pace']
    assert not paced
    stamp(A, prof, 0)
    for n, (sl, lu) in enumerate(order):
        if n in (14, 21, 33, 41): stamp(A, prof, {14: 2, 21: 3, 33: 4, 41: 5}[n], 1)
        A(f'v_smfmac_f32_16x16x64_bf16 {v(ACC+4*sl,4)}, {v(MEM+4*lu,4)}, {u(wunit(sl*7+lu),8)}, v{vIDX}')
        for x in gaps[n]: A(x)
    def retry():
        A.label(lre)
        polls()
        if prof: A('s_add_u32 s98, s98, 1')
        timeout_check(A, code)
        A.nop(8)
        zero_acc(A, 28)
        A('s_waitcnt vmcnt(0)')
        A(f's_branch {lp}')
    late.add(retry)
    stamp(A, prof, 2); stamp(A, prof, 6, 1)
    return rest

def can_train(A, c, n=None):
    n = n or CFG['ncan']
    for k in range(n):
        c.issue()
        if k < n-1: A.nop(CFG['cgap'])
    c.wait()

def role_A(A, prof=False):
    late = Late()
    sXS, sT0, sT6, sK0, sK3, sP, sX0, sX3, sSGP, sCMs, sNEED = range(59, 70)
    vTW, vTR, vSW, vMK, vSR, vPA, vDA, vDB, vDS, vCM, vSG = 10, 11, 110, 111, 112, 113, 107, 108, 109, 106, 14
    XSR, CV, SA = 72, 114, 44
    DNp = [100, 56, 60, 104]; TBp = [16, 20, 24, 116]
    LT = 8192; LS = LT + 21504
    A.label('L_roleA')
    A(f"""s_mul_i32 s{sXS}, s{sLAY}, {XS_OFF[1]-XS_OFF[0]}
    s_add_u32 s{sXS}, s{sXS}, {XS_OFF[0]}
    s_and_b32 s42, s{sWAVE}, 1
    s_mul_i32 s43, s{sWAVE}, 7
    s_mul_i32 s44, s{sIDX}, 28
    s_add_u32 s44, s44, s43
    s_add_u32 s{sT0}, s44, s42
    s_mul_i32 s{sT0}, s{sT0}, 14336
    s_mul_i32 s45, s42, 6
    s_sub_u32 s45, 6, s45
    s_add_u32 s{sT6}, s44, s45
    s_mul_i32 s{sT6}, s{sT6}, 14336
    s_add_u32 s{sK0}, s43, s42
    s_lshr_b32 s{sK0}, s{sK0}, 1
    s_add_u32 s{sK3}, s43, s45
    s_lshr_b32 s{sK3}, s{sK3}, 1
    s_lshl_b32 s46, s42, 3""")
    chain_init(A, lambda slot: (sT0, WA_OFF + slot*14336) if slot < 6 else (sT6, WA_OFF))
    A(f"""s_lshl_b32 s{sX0}, s{sK0}, 10
    s_add_u32 s{sX0}, s{sX0}, s{sXS}
    s_lshl_b32 s{sX3}, s{sK3}, 10
    s_add_u32 s{sX3}, s{sX3}, s46
    s_add_u32 s{sX3}, s{sX3}, s{sXS}
    v_and_b32 v12, 63, v0
    v_lshrrev_b32 v13, 4, v12
    v_and_b32 v24, 15, v12
    v_and_b32 v15, 7, v12
    v_lshrrev_b32 v16, 5, v12
    v_lshlrev_b32 v16, 8, v16
    v_and_b32 v17, 1, v13
    v_lshl_add_u32 v16, v17, 3, v16
    v_lshl_add_u32 v16, v15, 4, v16
    s_lshl_b32 s40, s{sK0}, 9
    v_add_u32 v{vDA}, s40, v16
    v_add_u32 v{vDB}, 1024, v{vDA}
    s_lshl_b32 s40, s{sK3}, 9
    s_lshr_b32 s41, s46, 1
    s_add_u32 s40, s40, s41
    v_add_u32 v{vDS}, s40, v16
    s_mul_i32 s40, s{sWAVE}, {7*768}
    s_add_u32 s40, s40, {LT}
    v_mul_u32_u24 v{vTW}, 192, v13
    v_lshl_add_u32 v{vTW}, v24, 3, v{vTW}
    v_add_u32 v{vTW}, s40, v{vTW}
    v_and_b32 v16, 3, v12
    v_mul_u32_u24 v{vTR}, 192, v16
    v_lshrrev_b32 v16, 2, v12
    v_lshl_add_u32 v{vTR}, v16, 3, v{vTR}
    v_add_u32 v{vTR}, s40, v{vTR}
    s_mul_i32 s40, s{sWAVE}, 3744
    s_add_u32 s40, s40, {LS}
    v_mul_u32_u24 v{vSW}, 288, v13
    v_lshl_add_u32 v{vSW}, v24, 4, v{vSW}
    v_add_u32 v{vSW}, s40, v{vSW}
    v_mov_b32 v16, 0xf149f2ca
    v_mov_b32 v17, v16
    v_mov_b32 v18, v16
    v_mov_b32 v19, v16
    ds_write_b128 v{vSW}, v[16:19] offset:2592
    v_cmp_gt_u32 vcc, 10, v24
    v_cndmask_b32 v{vMK}, 0, 1.0, vcc
    v_min_u32 v16, 12, v24
    v_mul_u32_u24 v{vSR}, 288, v16
    v_and_b32 v16, 1, v13
    s_lshl_b32 s40, s{sWAVE}, 1
    v_add_u32 v16, s40, v16
    v_lshrrev_b32 v17, 5, v12
    v_lshl_add_u32 v18, v17, 3, v16
    v_lshl_add_u32 v{vSR}, v18, 4, v{vSR}
    v_add_u32 v{vSR}, {LS}, v{vSR}
    s_lshr_b32 s40, s{sIDX}, 2
    s_mul_i32 s40, s40, 3072
    s_and_b32 s41, s{sIDX}, 3
    s_lshl_b32 s42, s41, 9
    s_add_u32 s42, s42, s40
    s_lshr_b32 s43, s41, 1
    s_lshl_b32 s43, s43, 9
    s_add_u32 s43, s43, s40
    s_add_u32 s43, s43, 2048
    s_and_b32 s41, s41, 1
    s_lshl2_add_u32 s43, s41, s43
    v_bfe_u32 v19, v24, 1, 1
    v_lshlrev_b32 v19, 8, v19
    v_and_b32 v20, 1, v24
    v_lshl_add_u32 v19, v20, 3, v19
    v_add_u32 v21, s43, v19
    v_bfe_u32 v20, v24, 2, 1
    v_lshl_add_u32 v19, v20, 2, v19
    v_add_u32 v19, s42, v19
    v_cmp_gt_u32 vcc, 8, v24
    v_cndmask_b32 v19, v21, v19, vcc
    v_lshl_add_u32 v{vPA}, v18, 4, v19
    s_mul_i32 s40, s{sWAVE}, {SIGR}
    s_add_u32 s40, s40, s{sPG}
    s_add_u32 s40, s40, {SIGP}
    s_lshl2_add_u32 s{sSGP}, s{sIDX}, s40
    s_and_b32 s40, s{sIDX}, 1
    s_mul_i32 s40, s40, {SIGR}
    s_add_u32 s{sCMs}, s{sPG}, s40
    s_add_u32 s{sCMs}, s{sCMs}, {SIGM}
    s_mov_b32 s76, 0x0fff0fff
    s_mov_b32 s77, 0x0fff0fff
    s_mov_b32 s70, 0x1f800000
    s_mov_b32 s71, {0 if CFG.get("forcemax") else 0x40000000}""")
    canary_addr(A, vCM, 16)
    A('s_waitcnt vmcnt(0) lgkmcnt(0)')
    A('s_barrier')
    prof_init(A, prof)
    xs = []
    for p in range(3):
        xs.append(f'buffer_load_dwordx4 {v(XSR+8*p,4)}, v{vL16}, {WS}, s{sX0} offen offset:{p*1024} sc1')
        xs.append(f'buffer_load_dwordx4 {v(XSR+8*p+4,4)}, v{vL16}, {WS}, s51 offen offset:{p*1024} sc1')
    xs.append(f'buffer_load_dwordx2 {v(XSR+24,2)}, v{vL16}, {WS}, s{sX3} offen sc1')
    xs.append(f'buffer_load_dwordx2 {v(XSR+26,2)}, v{vL16}, {WS}, s52 offen sc1')
    A.label('LA_loop')
    for x in slot_addr(sSP, sSTEP, 0): A(x)
    A(f"""s_add_u32 s{sP}, s{sSP}, {R_P}
    s_add_u32 s40, s{sSP}, s{sU0}
    s_add_u32 s41, s{sSP}, s{sU1}
    s_add_u32 s51, s{sX0}, 14336
    s_add_u32 s52, s{sX3}, 14336
    s_add_u32 s{sNEED}, s{sSTEP}, 1
    v_mov_b32 v{vSG}, s{sNEED}""")
    zero_acc(A, 28)
    if prof: A('s_mov_b32 s99, 0')
    A(f's_cmp_lg_u32 s{sWAVE}, 0')
    A('s_cbranch_scc1 LA_go')
    wait_ready(A, 1)
    backoff(A, CFG['sA'])
    can_train(A, Canary(A, late, [32, 33, 34, 35, 36, 37, 38, 39], vCM, sCMs, sSTEP, 6, 99 if prof else None))
    backoff(A, CFG['dM'])
    A.label('LA_go')
    A('s_barrier')
    def dn(p):
        d = DNp[p]
        if p == 3: return [f'ds_read2_b32 {v(d,2)}, v{vDS} offset0:0 offset1:32']
        ad, o = (vDA, 128*p) if p < 2 else (vDB, 0)
        return [f'ds_read2_b32 {v(d,2)}, v{ad} offset0:{o} offset1:{o+32}', f'ds_read2_b32 {v(d+2,2)}, v{ad} offset0:{o+1} offset1:{o+33}']
    def tail(sl):
        c = CV if sl % 2 == 0 else 12
        return [f'v_cvt_pk_bf16_f32 v{c}, v{ACC+4*sl}, v{ACC+4*sl+1}',
                f'v_cvt_pk_bf16_f32 v{c+1}, v{ACC+4*sl+2}, v{ACC+4*sl+3}',
                f'ds_write_b64 v{vTW}, {v(c,2)} offset:{sl*768}',
                f'ds_read_b64_tr_b16 {v(TBp[sl//2]+2*(sl&1),2)}, v{vTR} offset:{sl*768}']
    nb = CFG['nbeh']
    q = g1(A, late, xs[:nb], dn(0) + dn(3), tail, 2, prof, paced=xs[nb:], nbar=CFG['nbar'])
    def g2(p, kt):
        if p < 3:
            ka = v(XSR+8*p+4*kt,4) if kt < 2 else v(DNp[p],4)
            A(f'v_mfma_f32_16x16x32_bf16 {v(SA+4*kt,4)}, {ka}, {v(TBp[p],4)}, {"0" if p==0 else v(SA+4*kt,4)}')
        else:
            ka = v(XSR+24+2*kt,2) if kt < 2 else v(DNp[3],2)
            A(f'v_mfma_f32_16x16x16_bf16 {v(SA+4*kt,4)}, {ka}, {v(TBp[3],2)}, {v(SA+4*kt,4)}')
    assert len(q) == 5, q
    d1, d2 = dn(1), dn(2)
    def pt(k):
        if k == CFG['sigP']: st2(A, late, [f'buffer_store_dword v{vSG}, off, {WS}, s{sSGP}'])
    A(q[0]); A(d1[0])
    A(f's_waitcnt vmcnt(0) lgkmcnt(5)')
    g2(0, 0); A(d1[1]); A(q[1]); A(q[2])
    g2(0, 1); A(q[3]); A(q[4])
    g2(0, 2); A(d2[0])
    g2(1, 0); A(d2[1])
    g2(1, 1)
    A(f's_waitcnt lgkmcnt(4)')
    g2(1, 2); g2(2, 0); g2(2, 1)
    A('s_waitcnt lgkmcnt(0)')
    g2(2, 2); g2(3, 0); g2(3, 1); g2(3, 2)
    A(f'ds_write_b128 v{vSW}, {v(SA,4)}')
    A(f'ds_write_b128 v{vSW}, {v(SA+4,4)} offset:1152')
    A(f'ds_write_b128 v{vSW}, {v(SA+8,4)} offset:2304')
    stamp(A, prof, 3); stamp(A, prof, 1, 2)
    A('s_waitcnt lgkmcnt(0)')
    A('s_barrier')
    stamp(A, prof, 2, 2)
    X = 16
    pt(0)
    for w in range(4): A(f'ds_read_b128 {v(X+4*w,4)}, v{vSR} offset:{w*3744}')
    pt(1)
    A('s_waitcnt lgkmcnt(2)')
    A(f'v_pk_add_f32 {v(X,2)}, {v(X,2)}, {v(X+4,2)}')
    A(f'v_pk_add_f32 {v(X+2,2)}, {v(X+2,2)}, {v(X+6,2)}')
    pt(2)
    A('s_waitcnt lgkmcnt(0)')
    A(f'v_pk_add_f32 {v(X+8,2)}, {v(X+8,2)}, {v(X+12,2)}')
    A(f'v_pk_add_f32 {v(X+10,2)}, {v(X+10,2)}, {v(X+14,2)}')
    A(f'v_pk_add_f32 {v(X,2)}, {v(X,2)}, {v(X+8,2)}')
    A(f'v_pk_add_f32 {v(X+2,2)}, {v(X+2,2)}, {v(X+10,2)}')
    stamp(A, prof, 3, 2)
    pt(3)
    A(f'v_permlane32_swap_b32 v{X}, v{X+2}')
    A(f'v_permlane32_swap_b32 v{X+1}, v{X+3}')
    A(f'v_pk_add_f32 {v(X,2)}, {v(X,2)}, {v(X+2,2)}')
    M, M2, E = X+4, X+5, X+6
    lmx = A.newlabel('Lmx'); lsm = A.newlabel('Lsm')
    def expsum():
        A(f'v_exp_f32 v{E}, v{X}')
        A(f'v_exp_f32 v{E+1}, v{X+1}')
        A(f'v_add_f32 v{E+2}, v{E}, v{E+1}')
        A(f'v_mul_f32 v{M}, v{E+2}, v{vMK}')
        A(f'v_mul_f32 v{M2}, v{E+2}, v{vMK}')
        A(f'v_permlane32_swap_b32 v{M}, v{M2}')
        A(f'v_add_f32 v{M}, v{M}, v{M2}')
        for r in (8, 4, 2, 1): A(f'v_add_f32_dpp v{M}, v{M}, v{M} row_ror:{r} row_mask:0xf bank_mask:0xf')
    def norm():
        A(f'v_rcp_f32 v{M2}, v{M}')
        A('s_mov_b64 exec, s[76:77]')
        A(f's_cmp_eq_u32 s{sPURE}, 0')
        A(f'v_mul_f32 v{E}, v{E}, v{M2}')
        A(f'v_mul_f32 v{E+1}, v{E+1}, v{M2}')
        A(f'v_cvt_pk_bf16_f32 v{E}, v{E}, v{E+1}')
        A(f'v_min_u32 v{CV}, -2, v{E}')
    stamp(A, prof, 4, 2)
    expsum()
    stamp(A, prof, 5, 2)
    A(f'v_subrev_u32 v{E+2}, s70, v{M}')
    A(f'v_cmp_le_u32 vcc, s71, v{E+2}')
    norm()
    A(f's_cbranch_vccnz {lmx}')
    A.label(lsm)
    def withmax():
        A.label(lmx)
        A('s_mov_b64 exec, -1')
        A(f'v_max_f32 v{M}, v{X}, v{X+1}')
        A(f'v_max_f32 v{M2}, v{X}, v{X+1}')
        A(f'v_permlane32_swap_b32 v{M}, v{M2}')
        A(f'v_max_f32 v{M}, v{M}, v{M2}')
        for r in (8, 4, 2, 1): A(f'v_max_f32_dpp v{M}, v{M}, v{M} row_ror:{r} row_mask:0xf bank_mask:0xf')
        A(f'v_sub_f32 v{X}, v{X}, v{M}')
        A(f'v_sub_f32 v{X+1}, v{X+1}, v{M}')
        expsum(); norm()
        A(f's_branch {lsm}')
    late.add(withmax)
    st2(A, late, [f'buffer_store_dword v{CV}, v{vPA}, {WS}, s{sP} offen'], cmp=False)
    stamp(A, prof, 4); stamp(A, prof, 6, 2)
    A('s_mov_b64 exec, -1')
    A(f's_add_u32 s{sX0}, s{sX0}, {SEGX}'); A(f's_add_u32 s{sX3}, s{sX3}, {SEGX}')
    prof_store(A, prof, 10)
    A(f's_add_u32 s{sSTEP}, s{sSTEP}, 1')
    A(f's_cmp_lt_u32 s{sSTEP}, 63')
    A('s_cbranch_scc1 LA_loop')
    A('s_branch L_done')
    late.emit()

def role_B(A, prof=False):
    late = Late()
    sT0, sYA, sYB, sZA, sZB, sNX, sLY, sSGM, sCMs, sCP, sNEED, sPL = range(59, 71)
    vMS, vRW, vRR, vCM, vCP, vLW, vLY, vSG = 10, 11, 116, 117, 118, 119, 0, 14
    STG, ZB = 76, 100
    YF, PF, PA, X = 44, 16, 28, 76
    LRB = 8192; LW = 16384; LYB = LW + 4*14336
    A.label('L_roleB')
    A(f"""s_sub_u32 s{sIDX}, s{sIDX}, 16
    s_mul_i32 s{sT0}, s{sWAVE}, 112
    s_lshl1_add_u32 s{sT0}, s{sIDX}, s{sT0}
    s_mul_i32 s{sT0}, s{sT0}, 14336""")
    tb = lambda slot: (sT0, WB_OFF + ((slot & 3)*28 + (slot >> 2))*14336)
    chain_init(A, tb)
    A(f's_mul_i32 s44, s{sWAVE}, 14336'); A(f's_add_u32 s44, s44, {LW}')
    for lu in range(7):
        A(f's_lshl_b32 s40, s{48+lu}, 1')
        A(f's_add_u32 s40, s40, s{sT0}')
        A(f's_add_u32 s40, s40, {tb(7)[1]}')
        A(f's_add_u32 m0, s44, {lu*2048}')
        A(f'buffer_load_dwordx4 v{vL16}, {WS}, s40 offen lds')
        A(f'buffer_load_dwordx4 v{vL16}, {WS}, s40 offen offset:1024 lds')
    canary_addr(A, vCM, 16)
    A(f"""v_add_u32 v{vLW}, s44, v{vL16}
    s_and_b32 s45, s{sWAVE}, 1
    s_mul_i32 s40, s{sLAY}, {Y_OFF[1]-Y_OFF[0]}
    s_add_u32 s40, s40, {Y_OFF[0]}
    s_lshl_b32 s41, s{sWAVE}, 12
    s_add_u32 s40, s40, s41
    s_lshl_b32 s42, s{sIDX}, 15
    s_add_u32 s{sYA}, s40, s42
    s_add_u32 s{sYB}, s{sYA}, 16384
    s_mul_i32 s40, s{sLAY}, {ZG_OFF[1]-ZG_OFF[0]}
    s_add_u32 s40, s40, {ZG_OFF[0]}
    s_lshl_b32 s41, s{sWAVE}, 10
    s_add_u32 s40, s40, s41
    s_lshl_b32 s42, s{sIDX}, 13
    s_add_u32 s{sZA}, s40, s42
    s_add_u32 s{sZB}, s{sZA}, 4096
    s_mul_i32 s{sPL}, s{sWAVE}, 3072
    s_add_u32 s{sPL}, s{sPL}, {R_P}
    s_and_b32 s40, s{sIDX}, 3
    s_mul_i32 s{sCP}, s40, {SIGR}
    s_add_u32 s{sCP}, s{sCP}, s{sPG}
    s_add_u32 s{sCP}, s{sCP}, {SIGP}
    s_add_u32 s{sCMs}, s{sPG}, {SIGM+2*SIGR}
    s_mul_i32 s40, s45, {SIGR}
    s_add_u32 s{sSGM}, s{sPG}, s40
    s_add_u32 s{sSGM}, s{sSGM}, {SIGM}
    s_lshl2_add_u32 s{sSGM}, s{sIDX}, s{sSGM}
    v_and_b32 v12, 63, v0
    v_lshrrev_b32 v13, 4, v12
    v_and_b32 v24, 15, v12
    v_lshlrev_b32 v{vCP}, 2, v24
    v_lshrrev_b32 v16, 5, v12
    v_and_b32 v15, 1, v13
    v_lshlrev_b32 v15, 2, v15
    v_lshl_add_u32 v15, v16, 1, v15
    v_and_b32 v17, 1, v24
    v_add_u32 v15, v15, v17
    s_lshl_b32 s40, s{sIDX}, 4
    s_lshl_b32 s41, s45, 1
    s_add_u32 s40, s40, s41
    v_lshrrev_b32 v17, 2, v24
    v_lshlrev_b32 v17, 2, v17
    v_bfe_u32 v18, v24, 1, 1
    v_add3_u32 v17, v17, v18, s40
    v_lshrrev_b32 v18, 3, v17
    v_lshlrev_b32 v{vMS}, 8, v18
    v_and_b32 v18, 1, v17
    v_lshl_add_u32 v{vMS}, v18, 7, v{vMS}
    v_lshl_add_u32 v{vMS}, v15, 4, v{vMS}
    v_bfe_u32 v18, v17, 1, 2
    v_lshl_add_u32 v{vMS}, v18, 2, v{vMS}
    s_lshl_b32 s41, s{sWAVE}, 10
    s_add_u32 s41, s41, {LRB}
    v_add_u32 v{vRW}, s41, v{vL16}
    s_lshl_b32 s40, s45, 12
    s_add_u32 s40, s40, {LRB}
    v_add_u32 v{vRR}, s40, v{vL16}
    s_lshl_b32 s{sLY}, s{sWAVE}, 13
    s_add_u32 s{sLY}, s{sLY}, {LYB}
    v_add_u32 v{vLY}, s{sLY}, v{vL16}
    s_mov_b32 s72, s{sZA}
    s_mov_b32 s73, s{sZB}
    s_waitcnt vmcnt(0)""")
    prof_init(A, prof, 16)
    wrd = lambda lu: [f'ds_read_b128 {v(STG+8*(lu%3)+4*j,4)}, v{vLW} offset:{lu*2048+j*1024}' for j in range(2)]
    zgs = [f'buffer_store_dwordx4 {v(ZB+4*tl,4)}, v{vL16}, {WS}, s{72+tl} offen sc1' for tl in range(2)]
    zmv = [f'v_mov_b64 {v(ZB+r,2)}, {v(92+r,2)}' for r in range(0, 8, 2)]
    ydma = [f'buffer_load_dwordx4 v{vL16}, {WS}, s{sYA+tl} offen offset:{j*1024} sc1 lds' + (f'\ns_add_u32 m0, s{sLY}, 4096' if (tl, j) == (0, 3) else '') for tl in range(2) for j in range(4)]
    def prep():
        for x in slot_addr(sSP, sSTEP, 0) + slot_addr(sNX, sSTEP, 1): A(x)
        A(f"""s_add_u32 s40, s{sSP}, s{sU0}
        s_add_u32 s41, s{sSP}, s{sU1}
        s_add_u32 s47, s{sSP}, s{sPL}
        s_add_u32 s{sNEED}, s{sSTEP}, 1
        s_mov_b32 m0, s{sLY}
        v_mov_b32 v{vSG}, s{sNEED}""")
    wait_ready(A, 5)
    prep()
    A.label('LB_loop')
    backoff(A, CFG['dMB'])
    longops = (zgs + ydma) if CFG['zfirst'] else (ydma + zgs)
    nl = CFG['nlong']
    behind = ['s_barrier'] + longops[:nl] + [f'v_mov_b64 {v(ACC+i,2)}, 0' for i in range(0, 32, 2)] + sum([wrd(lu) for lu in range(3)], [])
    def tail(sl):
        return [f'v_cvt_pk_bf16_f32 v{ZB+2*sl}, v{ACC+4*sl}, v{ACC+4*sl+1}', f'v_cvt_pk_bf16_f32 v{ZB+2*sl+1}, v{ACC+4*sl+2}, v{ACC+4*sl+3}']
    def extra(gaps):
        for k, x in enumerate(longops[nl:]): gaps[2 + k*CFG['ypace']].insert(0, x)
        for lu in range(7):
            g = 21 + 4*lu
            w = f's_waitcnt lgkmcnt({min(4, 2*(6-lu))})\n' if lu >= 3 else ''
            gaps[g].append(w + f'v_smfmac_f32_16x16x64_bf16 {v(ACC+28,4)}, {v(MEM+4*lu,4)}, {v(STG+8*(lu%3),8)}, v{vIDX}')
            if lu + 3 < 7:
                r = wrd(lu+3); gaps[g].append(r[0]); gaps[g+3].append(r[1])
    q = g1(A, late, behind, [], tail, 7, prof, extra=extra, dbeh=0)
    for x in q + tail(7): A(x)
    for tl in range(2):
        for p in range(2):
            a0 = ACC + 16*tl + 4*p; b0 = a0 + 8
            for r in range(4): A(f'v_permlane32_swap_b32 v{a0+r}, v{b0+r}')
            for r in (0, 2): A(f'v_pk_add_f32 {v(a0+r,2)}, {v(a0+r,2)}, {v(b0+r,2)}')
            for d in range(2): A(f'v_cvt_pk_bf16_f32 v{92+4*tl+2*p+d}, v{a0+2*d}, v{a0+2*d+1}')
        for d in range(2): A(f'v_permlane16_swap_b32 v{92+4*tl+d}, v{92+4*tl+2+d}')
    stamp(A, prof, 3)
    A(f"""s_mov_b32 s72, s{sZA}
    s_mov_b32 s73, s{sZB}
    s_add_u32 s{sZA}, s{sZA}, {SEGZ}
    s_add_u32 s{sZB}, s{sZB}, {SEGZ}
    s_add_u32 s{sYA}, s{sYA}, {SEGY}
    s_add_u32 s{sYB}, s{sYB}, {SEGY}
    s_cmp_ge_u32 s{sSTEP}, 63
    s_cbranch_scc1 LB_last""")
    for r in range(0, 8, 2): A(f'v_mov_b64 {v(PA+r,2)}, 0')
    A(f's_waitcnt vmcnt({0 if CFG["zfirst"] else 2})')
    stamp(A, prof, 4)
    for k in range(8): A(f'ds_read_b128 {v(YF+4*k,4)}, v{vLY} offset:{k*1024}')
    if prof: A('s_mov_b32 s97, 0'); A('s_mov_b32 s96, 0')
    A(f's_cmp_lg_u32 s{sWAVE}, 0')
    A('s_cbranch_scc1 LB_go')
    backoff(A, CFG['sB'])
    can_train(A, Canary(A, late, [36, 37, 38, 39, 40, 41, 42, 43], vCP, sCP, sNEED, 4, 97 if prof else None))
    backoff(A, CFG['dP'])
    A.label('LB_go')
    A('s_barrier')
    pl = [f'buffer_load_dwordx4 {v(PF+4*k,4)}, v{vL16}, {WS}, s47 offen offset:{k*1024} sc1' for k in range(3)]
    for x in pl: A(x)
    A.label('LB_round')
    sm = lambda tl, pf, b: A(f'v_smfmac_f32_16x16x64_bf16 {v(PA+4*tl,4)}, {v(PF+4*pf,4)}, {v(b,8)}, v{vIDX}')
    A('s_waitcnt vmcnt(2) lgkmcnt(0)')
    stamp(A, prof, 5)
    sm(0, 0, YF)
    A(f'v_max3_u32 v12, v{PF}, v{PF+1}, v{PF+2}')
    sm(1, 0, YF+16)
    A('s_waitcnt vmcnt(1)')
    A(f'v_max3_u32 v12, v12, v{PF+3}, v{PF+4}')
    sm(0, 1, YF+8)
    A(f'v_max3_u32 v12, v12, v{PF+5}, v{PF+6}')
    sm(1, 1, YF+24)
    A('s_waitcnt vmcnt(0)')
    A(f'v_max3_u32 v12, v12, v{PF+7}, v{PF+8}')
    sm(0, 2, ZB)
    A(f'v_max3_u32 v12, v12, v{PF+9}, v{PF+10}')
    sm(1, 2, ZB+8)
    A(f'v_max_u32 v12, v12, v{PF+11}')
    A('v_cmp_eq_u32 vcc, -1, v12')
    A(f'ds_write_b128 v{vRW}, {v(PA,4)}')
    lrr = A.newlabel('Lrr')
    A(f's_cbranch_vccnz {lrr}')
    A(f'ds_write_b128 v{vRW}, {v(PA+4,4)} offset:4096')
    def out_rr():
        A.label(lrr)
        for x in pl: A(x)
        if prof: A('s_add_u32 s96, s96, 1')
        timeout_check(A, 3)
        A.nop(8)
        for r in range(0, 8, 2): A(f'v_mov_b64 {v(PA+r,2)}, 0')
        A('s_branch LB_round')
    late.add(out_rr)
    A(f's_cmp_ge_u32 s{sWAVE}, 2')
    A('s_waitcnt lgkmcnt(0)')
    A('s_barrier')
    A('s_cbranch_scc1 LB_next')
    for w in range(4): A(f'ds_read_b128 {v(X+4*w,4)}, v{vRR} offset:{w*1024}')
    stamp(A, prof, 6)
    A('s_mov_b32 vcc_lo, 0x55555555')
    A('s_mov_b32 vcc_hi, 0x55555555')
    A('s_waitcnt lgkmcnt(2)')
    A(f'v_pk_add_f32 {v(X,2)}, {v(X,2)}, {v(X+4,2)}')
    A(f'v_pk_add_f32 {v(X+2,2)}, {v(X+2,2)}, {v(X+6,2)}')
    A('s_waitcnt lgkmcnt(0)')
    A(f'v_pk_add_f32 {v(X+8,2)}, {v(X+8,2)}, {v(X+12,2)}')
    A(f'v_pk_add_f32 {v(X+10,2)}, {v(X+10,2)}, {v(X+14,2)}')
    A(f'v_pk_add_f32 {v(X,2)}, {v(X,2)}, {v(X+8,2)}')
    A(f'v_pk_add_f32 {v(X+2,2)}, {v(X+2,2)}, {v(X+10,2)}')
    A(f'v_permlane32_swap_b32 v{X}, v{X+2}')
    A(f'v_permlane32_swap_b32 v{X+1}, v{X+3}')
    A(f'v_pk_add_f32 {v(X,2)}, {v(X,2)}, {v(X+2,2)}')
    A(f'v_cndmask_b32_dpp v{X+4}, v{X+1}, v{X}, vcc quad_perm:[1,0,3,2] row_mask:0xf bank_mask:0xf')
    A('s_not_b64 vcc, vcc')
    A(f'v_cndmask_b32_dpp v{X+5}, v{X}, v{X+1}, vcc quad_perm:[1,0,3,2] row_mask:0xf bank_mask:0xf')
    A(f's_cmp_eq_u32 s{sPURE}, 0')
    A(f'v_cvt_pk_bf16_f32 v{X+4}, v{X+4}, v{X+5}')
    A(f'v_min_u32 v13, -2, v{X+4}')
    st2(A, late, [f'buffer_store_dword v13, v{vMS}, {WS}, s{sNX} offen'], cmp=False)
    stamp(A, prof, 7)
    A(f's_add_u32 s{sSTEP}, s{sSTEP}, 1')
    A.label('LB_next2')
    for x in zmv: A(x)
    prof_store(A, prof, 10)
    prep()
    A('s_barrier')
    A('s_branch LB_loop')
    hint = [f'buffer_store_dword v{vSG}, off, {WS}, s{sSGM}', f'buffer_store_dword v{vSG}, off, {WS}, s{sSGM} offset:{2*SIGR}']
    A.label('LB_next')
    st2(A, late, hint)
    A(f's_add_u32 s{sSTEP}, s{sSTEP}, 1')
    A(f's_cmp_lg_u32 s{sWAVE}, 2')
    A('s_cbranch_scc1 LB_w3')
    if prof: A('s_mov_b32 s99, 0')
    can_train(A, Canary(A, late, [36, 37, 38, 39, 40, 41, 42, 43], vCM, sCMs, sSTEP, 9, 99 if prof else None), 3)
    A('s_branch LB_next2')
    A.label('LB_w3')
    A(f's_cmp_ge_u32 s{sSTEP}, 63')
    A(f's_cbranch_scc1 LB_next2')
    wait_ready(A, 5)
    A('s_branch LB_next2')
    A.label('LB_last')
    for x in zmv: A(x)
    for x in zgs: A(x)
    A(f'v_mov_b32 v{vSG}, 0x7f')
    A('s_waitcnt vmcnt(0)')
    A('s_barrier')
    st2(A, late, hint)
    A('s_branch L_done')
    late.emit()

def role_H(A):
    late = Late()
    A.label('L_roleH')
    if CFG.get('tprof'): A('s_memrealtime s[80:81]')
    A(f"""v_and_b32 v12, 63, v0
    v_lshlrev_b32 v{vL16}, 4, v12
    s_mov_b32 s{sSTEP}, 0
    s_cmp_eq_u32 s{sIDX}, 31
    s_cbranch_scc1 LH_1""")
    sC0, sC1, sMG, sPO, sRA = 60, 61, 62, 63, 64
    A(f"""s_lshl_b32 s{sC0}, s{sWAVE}, 11
    s_add_u32 s{sC1}, s{sC0}, 1024
    s_min_u32 s{sC1}, s{sC1}, 6144
    s_mul_i32 s{sMG}, s{sLAY}, {MEMG_OFF[1]-MEMG_OFF[0]}
    s_add_u32 s{sMG}, s{sMG}, {MEMG_OFF[0]}
    s_mul_i32 s{sPO}, s{sWAVE}, 3072
    s_add_u32 s{sPO}, s{sPO}, {R_P}
    s_lshl2_add_u32 s{sPG}, s{sWAVE}, s{sPG}
    v_add_u32 v4, s{sC0}, v{vL16}
    v_lshrrev_b32 v13, 4, v12
    v_lshlrev_b32 v5, 8, v13
    v_bfe_u32 v15, v12, 3, 1
    v_lshl_add_u32 v5, v15, 3, v5
    v_and_b32 v15, 7, v12
    v_lshl_add_u32 v5, v15, 4, v5
    v_add_u32 v5, s{sC0}, v5
    v_add_u32 v6, 1024, v5
    v_mov_b32 v32, -1
    v_mov_b32 v33, -1
    v_mov_b32 v34, -1
    v_mov_b32 v35, -1""")
    for k in range(NSLOT):
        A(f's_add_u32 s40, s{sRING}, {k*SLOT}')
        A(f's_add_u32 s41, s40, s{sC0}'); A(f's_add_u32 s42, s40, s{sPO}')
        for j in range(2): A(f'buffer_load_dwordx4 v[16:19], v{vL16}, {WS}, s41 offen offset:{j*1024} sc1')
        for j in range(3): A(f'buffer_load_dwordx4 v[16:19], v{vL16}, {WS}, s42 offen offset:{j*1024} sc1')
    A('s_waitcnt vmcnt(0)')
    A.label('LH0_loop')
    A(f's_add_u32 s46, s{sSTEP}, 5')
    A(f'v_mov_b32 v7, s46')
    st2(A, late, [f'buffer_store_dword v7, off, {WS}, s{sPG}'])
    for x in slot_addr(sSP, sSTEP, 0) + slot_addr(sRA, sSTEP, NSLOT-2): A(x)
    A(f's_add_u32 s40, s{sSP}, s{sC0}'); A(f's_add_u32 s41, s{sSP}, s{sC1}')
    A.label('LH0_poll')
    A(f'buffer_load_dwordx4 v[16:19], v{vL16}, {WS}, s40 offen sc1')
    A(f'buffer_load_dwordx4 v[20:23], v{vL16}, {WS}, s41 offen sc1')
    timeout_check(A, 10)
    A(f"""s_waitcnt vmcnt(0)
    ds_write_b128 v4, v[16:19]
    ds_write_b128 v4, v[20:23] offset:1024
    ds_read2_b32 v[24:25], v5 offset0:0 offset1:32
    ds_read2_b32 v[26:27], v5 offset0:1 offset1:33
    ds_read2_b32 v[28:29], v6 offset0:0 offset1:32
    ds_read2_b32 v[30:31], v6 offset0:1 offset1:33
    v_max3_u32 v12, v16, v17, v18
    v_max3_u32 v12, v12, v19, v20
    v_max3_u32 v12, v12, v21, v22
    v_max_u32 v12, v12, v23
    v_cmp_eq_u32 vcc, -1, v12
    s_add_u32 s42, s{sMG}, s{sC0}
    s_add_u32 s43, s{sMG}, s{sC1}
    s_waitcnt lgkmcnt(0)
    s_cbranch_vccnz LH0_poll
    buffer_store_dwordx4 v[24:27], v{vL16}, {WS}, s42 offen sc1
    buffer_store_dwordx4 v[28:31], v{vL16}, {WS}, s43 offen sc1""")
    import gen_tok
    gen_tok.rt(A, 1); gen_tok.rt_store(A, 2)
    A(f"""
    s_add_u32 s{sMG}, s{sMG}, {SEGM}
    s_add_u32 s42, s{sRA}, s{sC0}
    s_add_u32 s43, s{sRA}, s{sPO}""")
    st2(A, late, [f'buffer_store_dwordx4 v[32:35], v{vL16}, {WS}, s42 offen offset:{j*1024}' for j in range(2)] +
                 [f'buffer_store_dwordx4 v[32:35], v{vL16}, {WS}, s43 offen offset:{j*1024}' for j in range(3)])
    A(f"""s_waitcnt vmcnt(0)
    s_add_u32 s{sSTEP}, s{sSTEP}, 1
    s_cmp_lt_u32 s{sSTEP}, 64
    s_cbranch_scc1 LH0_loop
    s_branch L_done""")
    A.label('LH_1')
    sSG, sFL, sXT = 60, 61, 62
    canary_addr(A, 4, 15)
    A(f"""s_add_u32 s{sSG}, s{sPG}, {SIGM+3*SIGR}
    v_and_b32 v15, 15, v12
    v_lshlrev_b32 v5, 7, v15
    v_lshlrev_b32 v6, 7, v12
    s_cmp_eq_u32 s{sWAVE}, 1
    s_cbranch_scc1 LH_z
    s_cmp_lg_u32 s{sWAVE}, 0
    s_cbranch_scc1 L_done
    s_mul_i32 s{sXT}, s{sLAY}, {XS_OFF[1]-XS_OFF[0]}
    s_add_u32 s{sXT}, s{sXT}, {XS_OFF[0]}
    v_and_b32 v8, 3, v12
    v_lshlrev_b32 v8, 2, v8""")
    A.label('LH1_loop')
    flag_addr(A, sFL, F_Y, sSTEP)
    A(f's_sub_u32 s46, s{sSTEP}, 3')
    A(f's_max_i32 s46, s46, 0')
    A.label('LH1_poll')
    A(f'buffer_load_dword v16, v5, {WS}, s{sFL} offen sc1')
    A(f'buffer_load_dword v17, v4, {WS}, s{sSG} offen sc1')
    timeout_check(A, 11)
    A(f"""s_waitcnt vmcnt(0)
    v_cmp_ne_u32 vcc, 1, v16
    v_cmp_gt_u32 s[42:43], s46, v17
    s_or_b64 vcc, vcc, s[42:43]
    s_cbranch_vccnz LH1_poll""")
    for k in range(4):
        A(f's_add_u32 s40, s{sXT}, {min(k*8192, SEGX-8192)}')
        A(f'buffer_load_dword v18, v6, {WS}, s40 offen sc1')
    A(f"""s_add_u32 s{sXT}, s{sXT}, {SEGX}
    s_add_u32 s{sSTEP}, s{sSTEP}, 1
    v_mov_b32 v7, s{sSTEP}
    s_waitcnt vmcnt(0)""")
    st2(A, late, [f'buffer_store_dword v7, v8, {WS}, s{sPG} offen offset:16'])
    A(f"""s_cmp_lt_u32 s{sSTEP}, 63
    s_cbranch_scc1 LH1_loop
    s_branch L_done""")
    A.label('LH_z')
    A('v_mov_b32 v7, 1')
    A.label('LHz_loop')
    flag_addr(A, sFL, F_Z, sSTEP)
    A(f's_add_u32 s46, s{sSTEP}, 2')
    A.label('LHz_poll')
    A(f'buffer_load_dword v17, v4, {WS}, s{sSG} offen sc1')
    timeout_check(A, 12)
    A(f"""s_waitcnt vmcnt(0)
    v_cmp_gt_u32 vcc, s46, v17
    s_cbranch_vccnz LHz_poll
    buffer_store_dword v7, off, {WS}, s{sFL} sc1
    s_add_u32 s{sSTEP}, s{sSTEP}, 1
    s_cmp_lt_u32 s{sSTEP}, 64
    s_cbranch_scc1 LHz_loop
    s_branch L_done""")
    late.emit()

def main_prologue(A, name):
    A.raw(f'.globl {name}\n.p2align 8\n.type {name},@function\n{name}:')
    A(f'''s_cmp_ge_u32 s2, 256
    s_cbranch_scc1 L_done
    s_load_dwordx4 s[4:7], s[0:1], 96
    s_getreg_b32 s{sGRP}, hwreg(HW_REG_XCC_ID)
    s_and_b32 s{sGRP}, s{sGRP}, 7
    v_lshrrev_b32 v1, 6, v0
    v_readfirstlane_b32 s{sWAVE}, v1
    s_mov_b32 s{sTMO}, {TMO}
    s_mov_b32 s{sSTEP}, 0
    s_mov_b32 s{sIDX}, 0
    s_waitcnt lgkmcnt(0)
    s_mov_b32 s8, s6
    s_mov_b32 s9, s7
    s_mov_b32 s10, {WS_BYTES}
    s_mov_b32 s11, 0x20000
    s_mov_b32 s12, s4
    s_mov_b32 s13, s5
    s_mov_b32 s14, 256
    s_mov_b32 s15, 0x20000
    v_mov_b32 v3, 0
    s_cmp_lg_u32 s{sWAVE}, 0
    s_cbranch_scc1 L_tk
    s_lshl_b32 s40, s{sGRP}, 2
    v_mov_b32 v1, 1
    v_mov_b32 v2, s40
    s_mov_b64 exec, 1
    buffer_atomic_add v1, v2, {DBG}, 0 offen sc0 sc1
    s_waitcnt vmcnt(0)
    v_readfirstlane_b32 s41, v1
    s_cmp_lt_u32 s41, 32
    s_cbranch_scc1 L_tk1
    v_mov_b32 v1, 1
    buffer_atomic_add v1, v3, {DBG}, 0 offen offset:32 sc0 sc1
    s_waitcnt vmcnt(0)
    v_add_u32 v1, 32, v1
    L_tk1:
    ds_write_b32 v3, v1
    s_mov_b64 exec, -1
    s_waitcnt lgkmcnt(0)
    L_tk:
    s_barrier
    ds_read_b32 v1, v3
    s_waitcnt lgkmcnt(0)
    v_readfirstlane_b32 s{sIDX}, v1
    s_barrier
    v_and_b32 v4, 7, v0
    v_lshlrev_b32 v4, 2, v4
    s_cmp_lt_u32 s{sIDX}, 32
    s_cbranch_scc1 L_role_known
    L_ovf:''')
    timeout_check(A, 13)
    A(f'buffer_load_dword v5, v4, {DBG}, 0 offen sc1')
    A('s_waitcnt vmcnt(0)')
    A('s_mov_b32 s40, 0')
    for x in range(8):
        A(f'v_readlane_b32 s{48+x}, v5, {x}')
    for x in range(8):
        A(f's_add_u32 s40, s40, s{48+x}')
    A(f'''s_cmp_lt_u32 s40, 256
    s_cbranch_scc1 L_ovf
    s_sub_u32 s41, s{sIDX}, 32''')
    for x in range(8):
        A(f'''s_min_u32 s42, s{48+x}, 32
        s_sub_u32 s43, 32, s42
        s_mov_b32 s{sGRP}, {x}
        s_add_u32 s{sIDX}, s42, s41
        s_cmp_lt_u32 s41, s43
        s_cbranch_scc1 L_role_known
        s_sub_u32 s41, s41, s43''')
    A('s_branch L_done')
    A.label('L_role_known')

def purity(A, force_impure=False):
    lp = A.newlabel('Lpu'); le = A.newlabel('Lpe')
    A.label(lp)
    timeout_check(A, 14)
    A(f'buffer_load_dword v5, v4, {DBG}, 0 offen sc1')
    A('s_waitcnt vmcnt(0)')
    A(f'v_readlane_b32 s41, v5, s{sGRP}')
    A(f's_mov_b32 s{sPURE}, {0 if force_impure else 1}')
    A('s_cmp_ge_u32 s41, 32')
    A(f's_cbranch_scc1 {le}')
    A('s_mov_b32 s40, 0')
    for x in range(8):
        A(f'v_readlane_b32 s41, v5, {x}')
        A('s_add_u32 s40, s40, s41')
    A(f's_mov_b32 s{sPURE}, 0')
    A('s_cmp_lt_u32 s40, 256')
    A(f's_cbranch_scc1 {lp}')
    A.label(le)


def chain_dispatch(A, prof, force_impure):
    purity(A, force_impure)
    chain_bases(A)
    A(f's_cmp_ge_u32 s{sIDX}, 30')
    A('s_cbranch_scc1 L_roleH')
    A(f's_cmp_ge_u32 s{sIDX}, 16')
    A('s_cbranch_scc1 L_roleB')
    role_A(A, prof)
    role_B(A, prof)
    role_H(A)

def build_chain_test(prof=False, force_impure=False, groups=1, **cfg):
    CFG.clear(); CFG.update(DEF); CFG.update(cfg)
    A = Asm()
    A.raw('; @launch kernel=main_kernel grid=(256,1,1) block=(256,1,1) lds=114688')
    A.raw('.amdgcn_target "amdgcn-amd-amdhsa--gfx950"\n.text')
    main_prologue(A, 'main_kernel')
    A(f's_cmp_ge_u32 s{sGRP}, {groups}')
    A('s_cbranch_scc1 L_done')
    chain_dispatch(A, prof, force_impure)
    A.label('L_done')
    A('s_endpgm')
    emit_timeouts(A, range(1, 15))
    A.raw('.section .rodata,"a"')
    A.raw(kernel_desc('main_kernel'))
    return A.text()

if __name__ == '__main__':
    open('chain_p.s', 'w').write(build_chain_test(prof=True))
    open('chain_t.s', 'w').write(build_chain_test(prof=False))
```

```python
from asmgen import *
from layout import *
WS = 's[8:11]'
CSC = 1.4426950408889634/16
import struct
def f32(x): return '0x%08x' % struct.unpack('<I', struct.pack('<f', x))[0]

def srd(A, d, sp, nbytes):
    A(f's_mov_b32 s{d}, s{sp}'); A(f's_mov_b32 s{d+1}, s{sp+1}'); A(f's_mov_b32 s{d+2}, {nbytes}'); A(f's_mov_b32 s{d+3}, 0x20000')

def frag_stats(A, r, t, out):
    for d in range(4):
        A(f'v_lshlrev_b32 v{t}, 16, v{r+d}')
        A(f'v_and_b32 v{t+1}, 0xffff0000, v{r+d}')
        if d == 0:
            A(f'v_add_f32 v{out}, v{t}, v{t+1}'); A(f'v_mul_f32 v{out+1}, v{t}, v{t}')
        else:
            A(f'v_add_f32 v{out}, v{out}, v{t}'); A(f'v_fmac_f32 v{out+1}, v{t}, v{t}'); A(f'v_add_f32 v{out}, v{out}, v{t+1}')
        A(f'v_fmac_f32 v{out+1}, v{t+1}, v{t+1}')
    red_g(A, [out, out+1], t)

def red_g(A, regs, t, op='v_add_f32'):
    for sw in ('v_permlane16_swap_b32', 'v_permlane32_swap_b32'):
        for k, r in enumerate(regs): A(f'v_mov_b32 v{t+k}, v{r}')
        for k, r in enumerate(regs): A(f'{sw} v{r}, v{t+k}')
        for k, r in enumerate(regs): A(f'{op} v{r}, v{r}, v{t+k}')

def prep_kernel(A, name):
    A.raw(f'.globl {name}\n.p2align 8\n.type {name},@function\n{name}:')
    CH = 45056
    A(f'''s_cmp_ge_u32 s2, 256
    s_cbranch_scc1 LP_done
    s_load_dwordx4 s[36:39], s[0:1], 0
    s_load_dwordx8 s[40:47], s[0:1], 16
    s_load_dwordx2 s[6:7], s[0:1], 104
    v_lshrrev_b32 v1, 6, v0
    v_readfirstlane_b32 s32, v1
    v_and_b32 v0, 63, v0
    v_lshlrev_b32 v1, 4, v0
    s_lshr_b32 s33, s2, 7
    s_bfe_u32 s34, s2, 0x40003
    s_and_b32 s35, s2, 3
    s_bfe_u32 s48, s2, 0x10002
    s_waitcnt lgkmcnt(0)''')
    srd(A, 8, 6, WS_BYTES); srd(A, 12, 36, 2048*896); srd(A, 16, 38, 7168)
    A('''s_cmp_eq_u32 s33, 0
    s_cselect_b32 s20, s40, s44
    s_cselect_b32 s21, s41, s45
    s_cselect_b32 s24, s42, s46
    s_cselect_b32 s25, s43, s47
    s_mov_b32 s22, 3670016
    s_mov_b32 s23, 0x20000
    s_mov_b32 s26, 3670016
    s_mov_b32 s27, 0x20000''')
    A(f'''v_lshrrev_b32 v2, 3, v0
    s_and_b32 s49, s32, 1
    s_lshr_b32 s50, s32, 1
    v_lshl_add_u32 v3, s49, 3, v2
    v_lshrrev_b32 v4, 2, v3
    v_lshlrev_b32 v4, 3, v4
    v_and_b32 v5, 3, v3
    v_add_u32 v4, v4, v5
    v_lshrrev_b32 v5, 1, v3
    v_and_b32 v6, 7, v0
    v_xor_b32 v5, v5, v6
    v_lshlrev_b32 v5, 4, v5
    v_lshl_add_u32 v10, v4, 13, v5
    s_mul_i32 s51, s48, 224
    s_lshl2_add_u32 s51, s50, s51
    s_lshl_b32 s51, s51, 13
    s_lshl_b32 s52, s34, 9
    s_add_u32 s51, s51, s52''')
    A(f'''v_lshrrev_b32 v6, 4, v0
    v_and_b32 v7, 15, v0
    v_lshlrev_b32 v8, 2, v6
    v_xor_b32 v7, v7, v8
    v_mul_u32_u24 v11, 896, v6
    v_lshl_add_u32 v11, v7, 4, v11
    s_mul_i32 s53, s35, 7
    s_lshr_b32 s54, s53, 1
    s_lshl_b32 s54, s54, 6
    s_mul_i32 s55, s34, 229376
    s_add_u32 s54, s54, s55
    s_mul_i32 s55, s32, 3584
    s_add_u32 s54, s54, s55''')
    def dma_chunk(c):
        base = (c % 3)*CH
        for j in range(7):
            A(f's_add_u32 s56, s51, {j*32*8192 + c*128}')
            A(f's_lshl_b32 s57, s32, 10'); A(f's_add_u32 m0, s57, {base + j*4096}')
            A(f'buffer_load_dwordx4 v10, s[20:23], s56 offen lds')
        l1 = A.newlabel('Lq'); l2 = A.newlabel('Lq')
        A('s_cmp_lg_u32 s33, 0'); A(f's_cbranch_scc1 {l1}')
        for j in range(4):
            A(f's_add_u32 s58, s50, {2*j}'); A('s_min_u32 s58, s58, 6'); A('s_add_u32 s58, s58, s53')
            A('s_lshr_b32 s59, s58, 1'); A('s_lshl_b32 s59, s59, 5'); A('s_and_b32 s58, s58, 1'); A('s_lshl2_add_u32 s59, s58, s59')
            A('s_lshl_b32 s59, s59, 13'); A('s_add_u32 s59, s59, s52'); A(f's_add_u32 s59, s59, {c*128}')
            A(f's_add_u32 m0, s57, {base + 28672 + j*4096}')
            A(f'buffer_load_dwordx4 v10, s[24:27], s59 offen lds')
        A(f's_branch {l2}')
        A.label(l1)
        for j in range(4):
            A(f's_add_u32 s59, s54, {(c*64 + j*16)*896}')
            A(f's_add_u32 m0, s57, {base + 28672 + j*4096}')
            A(f'buffer_load_dwordx4 v11, s[24:27], s59 offen lds')
        A.label(l2)
    for c in range(3): dma_chunk(c)
    A(f'''v_and_b32 v2, 15, v0
    v_lshrrev_b32 v3, 4, v0
    v_mul_u32_u24 v12, 896, v2
    v_lshl_add_u32 v12, v3, 4, v12
    v_lshlrev_b32 v13, 3, v2
    s_lshr_b32 s60, s2, 1
    s_and_b32 s61, s2, 1
    s_mul_i32 s61, s61, 7
    s_add_u32 s62, s61, s32
    s_add_u32 s63, s32, 4
    s_min_u32 s63, s63, 6
    s_add_u32 s63, s63, s61
    s_mul_i32 s64, s60, 14336''')
    for k, sk in enumerate((62, 63)):
        A(f's_lshl_b32 s65, s{sk}, 6'); A('s_add_u32 s65, s65, s64')
        A(f'buffer_load_dwordx4 {v(16+4*k,4)}, v12, s[12:15], s65 offen')
    A(f'''v_and_b32 v4, 7, v0
    v_mul_u32_u24 v14, 896, v4
    v_lshl_add_u32 v14, v3, 5, v14
    v_bfe_u32 v4, v0, 3, 1
    v_lshl_add_u32 v14, v4, 2, v14
    s_min_u32 s66, s60, 6
    s_lshl_b32 s67, s66, 7''')
    for d in range(4): A(f'buffer_load_dword v{24+d}, v14, s[16:19], s67 offen offset:{8*d}')
    nfill = (ARM_END - ARM_OFF)//1024; nz = (FLAG_END - FLAG_OFF)//1024
    for r in range(4): A(f'v_mov_b32 v{28+r}, -1'); A(f'v_mov_b32 v{32+r}, 0')
    A('s_lshl2_add_u32 s68, s2, s32')
    for k in range((nfill + 1023)//1024):
        l = A.newlabel('Lf')
        A(f's_add_u32 s69, s68, {k*1024}')
        A(f's_cmp_ge_u32 s69, {nfill}'); A(f's_cbranch_scc1 {l}')
        A(f's_cmp_lt_u32 s69, 7'); A(f's_cbranch_scc1 {l}')
        A(f's_sub_u32 s70, s69, {NSLOT*SLOT//1024}'); A(f's_cmp_lt_u32 s70, 7'); A(f's_cbranch_scc1 {l}')
        A('s_lshl_b32 s69, s69, 10'); A(f's_add_u32 s69, s69, {ARM_OFF}')
        A(f'buffer_store_dwordx4 v[28:31], v1, {WS}, s69 offen')
        A.label(l)
    l = A.newlabel('Lf')
    A(f's_cmp_ge_u32 s68, {nz}'); A(f's_cbranch_scc1 {l}')
    A('s_lshl_b32 s69, s68, 10'); A(f's_add_u32 s69, s69, {FLAG_OFF}')
    A(f'buffer_store_dwordx4 v[32:35], v1, {WS}, s69 offen')
    A.label(l)
    A('s_waitcnt vmcnt(0)')
    for k, sk in enumerate((62, 63)):
        A(f's_lshl_b32 s65, s{sk}, 10'); A('s_add_u32 s65, s65, s64'); A(f's_add_u32 s65, s65, {X_OFF[0]}')
        A(f'buffer_store_dwordx4 {v(16+4*k,4)}, v1, {WS}, s65 offen')
        frag_stats(A, 16+4*k, 36, 40+2*k)
        A(f's_lshl_b32 s65, s{sk}, 7'); A('s_and_b32 s69, s60, 1'); A('s_mul_i32 s69, s69, 1792'); A('s_add_u32 s65, s65, s69')
        A('s_lshr_b32 s69, s60, 1'); A('s_lshl_b32 s69, s69, 12'); A('s_add_u32 s65, s65, s69'); A(f's_add_u32 s65, s65, {ST_OFF[0]}')
        A(f'buffer_store_dwordx2 {v(40+2*k,2)}, v13, {WS}, s65 offen')
    l = A.newlabel('Lf')
    A('s_cmp_ge_u32 s2, 14'); A(f's_cbranch_scc1 {l}')
    for d in range(4): A(f'v_min_u32 v{24+d}, -2, v{24+d}')
    A('s_and_b32 s69, s2, 1'); A(f's_mul_i32 s69, s69, {RING_OFF[1]-RING_OFF[0]}'); A('s_lshl_b32 s70, s66, 10'); A('s_add_u32 s69, s69, s70')
    A(f's_add_u32 s69, s69, {RING_OFF[0]}')
    A(f'buffer_store_dwordx4 v[24:27], v1, {WS}, s69 offen')
    A.label(l)
    ACC, OP = 64, 176
    OP = [176, 16]
    A(f'''v_lshrrev_b32 v4, 1, v2
    v_xor_b32 v5, v3, v4
    v_lshlrev_b32 v5, 4, v5
    v_lshl_add_u32 v5, v2, 7, v5
    v_xor_b32 v6, 64, v5
    s_lshl_b32 s69, s32, 13
    v_add_u32 v7, s69, v5
    v_add_u32 v8, s69, v6
    s_cmp_eq_u32 s32, 3
    s_cselect_b32 s70, 0, 4096
    v_add_u32 v60, s70, v7
    v_add_u32 v61, s70, v8''')
    A(f'''v_bfe_u32 v4, v0, 2, 2
    v_lshl_add_u32 v9, v3, 3, v4
    v_lshlrev_b32 v9, 8, v9
    v_and_b32 v62, 3, v0
    v_lshl_add_u32 v9, v62, 4, v9
    v_lshlrev_b32 v63, 6, v4
    s_and_b32 s71, s53, 1''')
    TA = 220
    for tl in range(7):
        A(f's_add_u32 s72, s71, {tl}'); A('s_lshr_b32 s73, s72, 1'); A('s_lshl_b32 s73, s73, 6'); A('s_and_b32 s72, s72, 1'); A('s_lshl_b32 s72, s72, 3')
        A(f'v_xor_b32 v{TA+tl}, s73, v63'); A(f'v_add3_u32 v{TA+tl}, v{TA+tl}, v9, s72')
    def reads(step, mat):
        c, ksub = step >> 1, step & 1; base = (c % 3)*CH; o = OP[step & 1]
        L = []
        for pt in range(4):
            ad = (7, 8, 60, 61)[(pt >> 1)*2 + ksub]
            L.append((ad, f'ds_read_b128 {v(o+4*pt,4)}, vX', base + (pt & 1)*2048))
        for tl in range(7):
            if mat == 0: L.append(((5, 6)[ksub], f'ds_read_b128 {v(o+16+4*tl,4)}, vX', base + 28672 + tl*2048))
            else:
                for hf in range(2): L.append((TA+tl, f'ds_read_b64_tr_b16 {v(o+16+4*tl+2*hf,2)}, vX', base + 28672 + ksub*8192 + hf*1024))
        return L
    def gemm(mat):
        hi = [0]
        regs = [5, 6, 7, 8, 60, 61] + list(range(TA, TA+7))
        def emit(L):
            out = []
            for ad, ins, off in L: out.append(ins.replace('vX', f'v{ad}') + f' offset:{off - hi[0]}')
            return out
        def rebase(nb):
            if nb != hi[0]:
                for r in regs: A(f'v_add_u32 v{r}, {(nb - hi[0]) & 0xffffffff}, v{r}')
                hi[0] = nb
        A('s_barrier')
        for x in emit(reads(0, mat)): A(x)
        for step in range(8):
            o = OP[step & 1]
            A('s_waitcnt lgkmcnt(0)')
            nxt = []
            if step == 1:
                A('s_barrier'); dma_chunk(3)
            if step == 5:
                A('s_waitcnt vmcnt(0)'); A('s_barrier')
            if step < 7:
                rebase((((step+1) >> 1) % 3)*CH)
                nxt = emit(reads(step+1, mat))
            for pt in range(4):
                for tl in range(7):
                    d = v(ACC + 4*(pt*7+tl), 4)
                    A(f'v_mfma_f32_16x16x32_bf16 {d}, {v(o+4*pt,4)}, {v(o+16+4*tl,4)}, {"0" if step == 0 else d}')
                    if nxt: A(nxt.pop(0))
    A('s_cmp_lg_u32 s33, 0'); A('s_cbranch_scc1 LP_g1')
    gemm(0)
    A(f's_mov_b32 s74, {f32(CSC)}')
    A('s_branch LP_out')
    A.label('LP_g1')
    gemm(1)
    A('s_mov_b32 s74, 1.0')
    A.label('LP_out')
    A.nop(10)
    A(f'''s_mul_i32 s75, s33, {WB_OFF}
    s_mul_i32 s76, s34, 28
    s_add_u32 s76, s76, s53
    s_mul_i32 s76, s76, 14
    s_mul_i32 s77, s48, 7
    s_add_u32 s76, s76, s77
    s_lshl1_add_u32 s76, s32, s76
    s_lshl_b32 s76, s76, 10
    s_add_u32 s75, s75, s76
    s_lshr_b32 s70, s70, 2''')
    for tl in range(7):
        for kk in range(2):
            t = 16 + 4*((tl*2+kk) % 8)
            for ab in range(2):
                a0 = ACC + 4*((2*kk+ab)*7+tl)
                for r in range(4): A(f'v_mul_f32 v{a0+r}, s74, v{a0+r}')
                A(f'v_cvt_pk_bf16_f32 v{t+2*ab}, v{a0}, v{a0+1}'); A(f'v_cvt_pk_bf16_f32 v{t+2*ab+1}, v{a0+2}, v{a0+3}')
            A(f's_add_u32 s78, s75, {tl*14336}')
            if kk: A('s_add_u32 s78, s78, s70')
            A(f'buffer_store_dwordx4 {v(t,4)}, v1, {WS}, s78 offen')
    A.label('LP_done')
    A('s_endpgm')
PREP_LDS = 3*45056
if __name__ == '__main__':
    A = Asm()
    A.raw(f'; @launch kernel=prep_kernel grid=(256,1,1) block=(256,1,1) lds={PREP_LDS}')
    A.raw('.amdgcn_target "amdgcn-amd-amdhsa--gfx950"\n.text')
    prep_kernel(A, 'prep_kernel')
    A.raw('.section .rodata,"a"'); A.raw(kernel_desc('prep_kernel', 256, 256))
    open('prep_t.s', 'w').write(A.text())
```

```python
from asmgen import *
from layout import *
from gen_chain import *
from gen_prep import srd, red_g, frag_stats, f32

sSEG = sSTEP
vONE = 15
vL, vFLG = 1, 2
XBS = 32768
sFULL, sGOT, sPEND, sPFA, sNFA, sBUF = 96, 97, 98, 99, 100, 95

def rt(A, k):
    if CFG.get('tprof'): A(f's_memrealtime s[{80+2*k}:{81+2*k}]')
def rt_store(A, n=6, t=8):
    if not CFG.get('tprof'): return
    l = A.newlabel('Lrt')
    A(f's_cmp_lg_u32 s{sWAVE}, 0'); A(f's_cbranch_scc1 {l}')
    A('s_waitcnt lgkmcnt(0)')
    for k in range(n): A(f'v_writelane_b32 v{t}, s{80+2*k}, {k}')
    A(f'''s_lshl_b32 s40, s{sGRP}, 5
    s_add_u32 s40, s40, s101
    s_lshl1_add_u32 s40, s40, s{sLAY}
    s_lshl_b32 s40, s40, 6
    s_add_u32 s40, s40, s{sSEG}
    s_lshl_b32 s40, s40, 5
    s_add_u32 s40, s40, {PROF_OFF + (4<<20)}
    v_lshrrev_b32 v{t+1}, 2, v1
    s_mov_b64 exec, 0xff
    buffer_store_dword v{t}, v{t+1}, {WS}, s40 offen
    s_mov_b64 exec, -1''')
    A.label(l)

def lay_base(A, dst, offs, extra=0):
    A(f's_mul_i32 s{dst}, s{sLAY}, {offs[1]-offs[0]}')
    A(f's_add_u32 s{dst}, s{dst}, {offs[0]+extra}')

def tok_init(A):
    A(f'''v_and_b32 v0, 63, v0
    v_lshlrev_b32 v{vL}, 4, v0
    s_mov_b32 s92, 0x1000000
    s_mov_b32 s{sGOT}, 0
    s_mov_b32 s{sPEND}, 0
    s_mov_b32 s{sBUF}, 0''')

def flag_lanes(A, reg, n):
    A(f'v_min_u32 v{reg}, {n-1}, v0'); A(f'v_lshlrev_b32 v{reg}, 7, v{reg}')


LSY = 126464
vSY, vSA = 0, 15
sTASK, sNPW = 94, 93
def sync_init(A, npw):
    A(f'v_mov_b32 v{vSY}, {LSY}'); A(f'v_mov_b32 v8, 0'); A('v_mov_b32 v9, 0'); A('v_mov_b32 v10, 0'); A('v_mov_b32 v11, 0')
    A(f'ds_write_b128 v{vSY}, v[8:11]'); A(f'ds_write_b128 v{vSY}, v[8:11] offset:16'); A(f's_mov_b32 s{sFULL}, {LSY}'); A(f's_mov_b32 s{sTASK}, 1'); A(f's_mov_b32 s{sNPW}, {npw-1}')
    A(f'v_mov_b32 v{vONE}, 1')
    A('s_waitcnt lgkmcnt(0)'); A('s_barrier')

def post_now(A, sfa, t, off=0):
    l = A.newlabel('Lpn')
    if not off: A(f'v_mov_b32 v{t}, s{sFULL}')
    A('s_mov_b64 exec, 1')
    A(f'ds_add_rtn_u32 v{t}, v{vSY if off else t}, v{vONE} offset:{off}')
    A('s_mov_b64 exec, -1')
    A('s_waitcnt lgkmcnt(0)')
    A(f'v_readfirstlane_b32 s45, v{t}')
    A(f's_and_b32 s45, s45, s{sNPW}'); A(f's_cmp_lg_u32 s45, s{sNPW}'); A(f's_cbranch_scc1 {l}')
    A(f'buffer_store_dword v{vONE}, off, {WS}, s{sfa} sc1')
    A.label(l)

def post_pending(A, t, wait=0):
    l = A.newlabel('Lpp')
    A(f's_cmp_eq_u32 s{sPEND}, 0'); A(f's_cbranch_scc1 {l}')
    A(f's_waitcnt vmcnt({wait})')
    post_now(A, sPFA, t)
    A(f's_mov_b32 s{sPEND}, 0')
    A.label(l)

def set_pending(A, kind, sslot, dst=sPFA, pend=True):
    flag_addr(A, dst, kind, sSEG)
    A(f's_lshl_b32 s41, s{sslot}, 7'); A(f's_add_u32 s{dst}, s{dst}, s41')
    if pend: A(f's_mov_b32 s{sPEND}, 1'); A(f's_xor_b32 s{sFULL}, s{sFULL}, 16')

def publish_ready(A, word, t, stask=sTASK):
    A(f'v_mov_b32 v{t}, s{stask}'); A(f'ds_write_b32 v{vSY}, v{t} offset:{word}')

def block_flags(A, items, code, word, t, stask=sTASK, pw=3, extra=None, each=None):
    l = A.newlabel('Lpf'); l2 = A.newlabel('Lpg'); lo = A.newlabel('Lph'); le = A.newlabel('Lpe')
    post_pending(A, t)
    A(f's_cmp_lg_u32 s{sWAVE}, {pw}'); A(f's_cbranch_scc1 {lo}')
    A(f's_branch {l2}')
    A.label(l)
    A(f's_sleep {CFG["psleep"]}')
    A.label(l2)
    for k, (sa, va) in enumerate(items): A(f'buffer_load_dword v{t+k}, v{va}, {WS}, s{sa} offen sc1')
    if each: A(each)
    timeout_check(A, code)
    A('s_waitcnt vmcnt(0)')
    for k in range(1, len(items)): A(f'v_and_b32 v{t}, v{t}, v{t+k}')
    A(f'v_cmp_ne_u32 vcc, 1, v{t}')
    A(f's_cbranch_vccnz {l}')
    if extra: extra()
    publish_ready(A, word, t, stask)
    A(f's_branch {le}')
    A.label(lo)
    if CFG['lsleep']: A(f's_sleep {CFG["lsleep"]}')
    A(f'ds_read_b32 v{t}, v{vSY} offset:{word}')
    A(f's_sub_u32 s92, s92, 1'); A(f's_cbranch_scc1 L_timeout_{code}')
    A('s_waitcnt lgkmcnt(0)')
    A(f'v_cmp_gt_u32 vcc, s{stask}, v{t}')
    A(f's_cbranch_vccnz {lo}')
    A.label(le)

class Probe:
    def __init__(self, A, late, items, word, t, stask=sTASK, pw=3): self.__dict__.update(locals())
    def issue(self):
        A = self.A; l = A.newlabel('Lqi')
        A(f's_cmp_lg_u32 s{sWAVE}, {self.pw}'); A(f's_cbranch_scc1 {l}')
        for k, (sa, va) in enumerate(self.items): A(f'buffer_load_dword v{self.t+k}, v{va}, {WS}, s{sa} offen sc1')
        A.label(l)
    def check(self, yes, back, again, wait=0):
        A = self.A; t = self.t; lo = A.newlabel('Lqo'); lf = A.newlabel('Lqf')
        A(f's_cmp_lg_u32 s{sWAVE}, {self.pw}'); A(f's_cbranch_scc1 {lo}')
        if wait is not None: A(f's_waitcnt vmcnt({wait})')
        for k in range(1, len(self.items)): A(f'v_and_b32 v{t}, v{t}, v{t+k}')
        A(f'v_cmp_ne_u32 s[46:47], 1, v{t}')
        A('s_cmp_lg_u64 s[46:47], 0'); A(f's_cbranch_scc1 {lf}')
        publish_ready(A, self.word, t, self.stask)
        A(f's_branch {yes}')
        A.label(lf)
        if again:
            for k, (sa, va) in enumerate(self.items): A(f'buffer_load_dword v{t+k}, v{va}, {WS}, s{sa} offen sc1')
        A(f's_branch {back}')
        A.label(lo)
        A(f'ds_read_b32 v{t}, v{vSY} offset:{self.word}')
        A('s_waitcnt lgkmcnt(0)')
        A(f'v_readfirstlane_b32 s46, v{t}')
        A(f's_cmp_ge_u32 s46, s{self.stask}'); A(f's_cbranch_scc1 {yes}')
        A(f's_branch {back}')

def x_dma(A, sx, sst):
    A(f's_xor_b32 s44, s{sBUF}, {XBS}')
    A(f's_mul_i32 s42, s{sWAVE}, 7168'); A(f's_add_u32 s43, s{sx}, s42'); A(f's_add_u32 s42, s42, s44'); A(f's_mov_b32 m0, s42')
    for j in range(4): A(f'buffer_load_dwordx4 v{vL}, {WS}, s43 offen offset:{j*1024} sc1 lds')
    A('s_add_u32 s43, s43, 4096'); A(f's_add_u32 m0, s42, 4096')
    for j in range(3): A(f'buffer_load_dwordx4 v{vL}, {WS}, s43 offen offset:{j*1024} sc1 lds')
    A(f's_lshl_b32 s42, s{sWAVE}, 10'); A(f's_add_u32 s43, s{sst}, s42'); A('s_add_u32 s42, s42, s44'); A('s_add_u32 m0, s42, 28672')
    A(f'buffer_load_dwordx4 v{vL}, {WS}, s43 offen sc1 lds')

OOB = 0x7ff00000
def dma_items(sx, sst, g0, pace, tag='dma'):
    L = []
    for j in range(7):
        pre = 's_mov_b32 m0, s48\n' if j == 0 else ('s_add_u32 m0, s48, 4096\ns_add_u32 s51, s%d, 4096\n' % sx if j == 4 else '')
        if pre: L.append((g0 + j*pace - 1, pre.strip()))
        L.append((g0 + j*pace, f'buffer_load_dwordx4 v{vL}, {WS}, s{sx if j < 4 else 51} offen offset:{(j%4)*1024} sc1 lds', tag))
    L.append((g0 + 7*pace - 1, 's_mov_b32 m0, s49'))
    L.append((g0 + 7*pace, f'buffer_load_dwordx4 v{vL}, {WS}, s{sst} offen sc1 lds', tag))
    return L

def post_items(g, wtag, scnt, sfa, t, cond=None):
    L = [(g-2, f'v_mov_b32 v{t}, s{scnt}'), (g, 'W:' + wtag), (g, f's_mov_b64 exec, 1\nds_add_rtn_u32 v{t}, v{t}, v{vONE}\ns_mov_b64 exec, -1', f'cnt{t}'),
         (g+7, f'L:cnt{t}'), (g+7, f'v_readfirstlane_b32 s52, v{t}'),
         (g+8, f's_and_b32 s52, s52, s{sNPW}\ns_cmp_eq_u32 s52, s{sNPW}\ns_cselect_b32 s52, s{sfa}, {OOB}'),
         (g+9, f'buffer_store_dword v{vONE}, off, {WS}, s52 sc1')]
    return L

class XPipe:
    def __init__(self, A, late, sNX, sNS, sNEED, code, vpr, vX, vS):
        self.__dict__.update(locals())
        A(f'v_lshrrev_b32 v8, 8, v{vL}'); A(f'v_mul_u32_u24 v{vS}, 896, v8'); A(f'v_bfe_u32 v8, v{vL}, 4, 4')
        A(f'v_lshl_add_u32 v{vS}, v8, 3, v{vS}'); A(f'v_add_u32 v{vS}, 28672, v{vS}')
    def top(self):
        A = self.A; lg = A.newlabel('Lxt'); lb = A.newlabel('Lxb'); ln = A.newlabel('Lxn')
        A(f's_cmp_eq_u32 s{sGOT}, 0'); A(f's_cbranch_scc1 {lb}')
        self.wline = len(A.lines); A('s_waitcnt vmcnt(0)')
        A.label(lg)
        def slow():
            A.label(lb)
            A(f's_cmp_lg_u32 s{self.sNEED}, 2'); A(f's_cbranch_scc1 {ln}')
            block_flags(A, [(sNFA, vFLG)], self.code, 4, self.vpr)
            A.label(ln)
            x_dma(A, self.sNX, self.sNS)
            A('s_waitcnt vmcnt(0)')
            A(f's_branch {lg}')
        self.late.add(slow)
        A(f's_xor_b32 s{sBUF}, s{sBUF}, {XBS}')
        A(f'v_add_u32 v{self.vX}, s{sBUF}, v{vL}')
        A(f'v_xor_b32 v{self.vS}, {XBS}, v{self.vS}')
        A('s_barrier')
    def set_top_wait(self, n): self.A.lines[self.wline] = f's_waitcnt vmcnt({n})'
    def stats_read(self, r):
        return [(0, f'ds_read2_b64 {v(r+4*j,4)}, v{self.vS} offset0:{32*j} offset1:{32*j+16}', 'st') for j in range(4)]
    def control(self, ga, gp, gd, pace, tpost):
        L = [(0, f's_add_u32 s{sTASK}, s{sTASK}, 1'),
             (0, f's_cmp_lg_u32 s{sPEND}, 0\ns_cselect_b32 s53, s{sFULL}, {LSY+20}\ns_cselect_b32 s{sPFA}, s{sPFA}, {OOB}'),
             (0, f's_mov_b32 s{sPEND}, 0'),
             (0, f's_xor_b32 s49, s{sBUF}, {XBS}\ns_mul_i32 s50, s{sWAVE}, 7168\ns_add_u32 s48, s49, s50'),
             (0, f's_lshl_b32 s51, s{sWAVE}, 10\ns_add_u32 s49, s49, s51\ns_add_u32 s49, s49, 28672')]
        L += post_items(ga, '', 53, sPFA, tpost)
        L += [(gp, f'buffer_load_dword v{self.vpr}, v{vFLG}, {WS}, s{sNFA} offen sc1', 'probe'),
              (gd, 'W:probe'), (gd, f'v_cmp_ne_u32 vcc, 1, v{self.vpr}'),
              (gd+2, f's_cmp_eq_u64 vcc, 0\ns_cselect_b32 s{sGOT}, 3, 1\ns_and_b32 s{sGOT}, s{sGOT}, s{self.sNEED}'),
              (gd+3, f's_add_u32 s56, s{self.sNX}, s50\ns_add_u32 s57, s{self.sNS}, s51'),
              (gd+3, f's_cmp_lg_u32 s{sGOT}, 0\ns_cselect_b32 s56, s56, {OOB}\ns_cselect_b32 s57, s57, {OOB}')]
        L += [(gd+4, f's_cmp_lg_u32 s{sGOT}, 0\ns_cselect_b32 s52, 4, 24'), (gd+4, f'v_add_u32 v{self.vpr}, s52, v{vSY}'), (gd+4, f'v_mov_b32 v{tpost}, s{sTASK}'),
              (gd+5, f'ds_write_b32 v{self.vpr}, v{tpost}')]
        L += dma_items(56, 57, gd+7, pace)
        L.sort(key=lambda x: x[0])
        return L
    def retry(self):
        A = self.A; l = A.newlabel('Lhr')
        A(f's_cmp_lg_u32 s{sGOT}, 0'); A(f's_cbranch_scc1 {l}')
        A(f's_cmp_eq_u32 s{self.sNEED}, 0'); A(f's_cbranch_scc1 {l}')
        A(f'buffer_load_dword v{self.vpr}, v{vFLG}, {WS}, s{sNFA} offen sc1')
        A('s_waitcnt vmcnt(0)')
        A(f'v_cmp_ne_u32 vcc, 1, v{self.vpr}')
        A(f's_cbranch_vccnz {l}')
        publish_ready(A, 4, self.vpr)
        x_dma(A, self.sNX, self.sNS)
        A(f's_mov_b32 s{sGOT}, 1')
        A.label(l)
    def finish(self):
        post_pending(self.A, self.vpr)

def chunks(lines, n=1):
    out = []; cur = []
    for ln in lines:
        if cur and not ln.startswith('s_cselect'): out.append('\n'.join(cur)); cur = []
        cur.append(ln)
    if cur: out.append('\n'.join(cur))
    return out

def bfr(A, r, t):
    A(f'v_cvt_pk_bf16_f32 v{r}, v{r}, v{r}'); A(f'v_lshlrev_b32 v{r}, 16, v{r}')

def stats_final(A, r, out, t, spread=True):
    for k in range(2):
        A(f'v_add_f32 v{r+k}, v{r+k}, v{r+2+k}'); A(f'v_add_f32 v{r+4+k}, v{r+4+k}, v{r+6+k}'); A(f'v_add_f32 v{r+8+k}, v{r+8+k}, v{r+10+k}')
    for k in range(2):
        A(f'v_add_f32 v{r+k}, v{r+k}, v{r+4+k}'); A(f'v_add_f32 v{r+8+k}, v{r+8+k}, v{r+12+k}')
    for k in range(2): A(f'v_add_f32 v{r+2+k}, v{r+k}, v{r+8+k}'); A(f'v_add_f32 v{r+k}, v{r+k}, v{r+8+k}')
    for k in range(2): A(f'v_permlane16_swap_b32 v{r+k}, v{r+2+k}')
    for k in range(2): A(f'v_add_f32 v{r+k}, v{r+k}, v{r+2+k}')
    A(f'v_mul_f32 v{r}, {f32(1/448)}, v{r}')
    A(f'v_mul_f32 v{r+1}, {f32(1/448)}, v{r+1}')
    A(f'v_fma_f32 v{r+1}, -v{r}, v{r}, v{r+1}')
    A(f'v_max_f32 v{r+1}, 0, v{r+1}')
    A(f'v_cvt_pk_bf16_f32 v{r}, v{r+1}, v{r}')
    A(f'v_lshlrev_b32 v{r+1}, 16, v{r}')
    A(f'v_and_b32 v{out+2}, 0xffff0000, v{r}')
    A(f'v_add_f32 v{r+1}, {f32(1e-5)}, v{r+1}')
    bfr(A, r+1, t)
    A(f'v_sqrt_f32 v{r+1}, v{r+1}')
    bfr(A, r+1, t)
    A(f'v_rcp_f32 v{out}, v{r+1}')
    if spread: stats_spread(A, out)
def stats_spread(A, out):
    for k in (0, 2): A(f'v_mov_b32 v{out+k+1}, v{out+k}')
    for k in (0, 2): A(f'v_permlane32_swap_b32 v{out+k}, v{out+k+1}')

def load_w7(A, base):
    for slot in range(7):
        sb, c = base(slot)
        for ks in range(14):
            if ks % 4 == 0: A(f's_add_u32 s40, s{sb}, {c + ks*1024}')
            A(f'buffer_load_dwordx4 {u(wfrag(slot, ks),4)}, v{vL}, {WS}, s40 offen offset:{(ks%4)*1024}')
        if slot >= 3: A('s_waitcnt vmcnt(42)')
    A('s_waitcnt vmcnt(0)')
def wfrag(slot, ks): return wunit(slot*7 + ks//2) + 4*(ks & 1)

def kv_gemm(A, acc, xf, vx, wf, ntile, w_is_a, S, pre=()):
    rd = lambda n: f'ds_read_b128 {v(xf+4*(n%3),4)}, v{vx} offset:{n*1024}'
    S.emit((0, rd(0), 'x0')); S.emit((0, rd(1), 'x1'))
    for x in pre: S.emit(x)
    S.emit((0, 'L:x0'))
    for n in range(28):
        tt, ks = divmod(n, 14)
        for t in range(ntile):
            d = v(acc+4*(t*2+tt), 4); w = u(wf(t, ks), 4); x = v(xf+4*(n%3), 4)
            a_, b_ = (w, x) if w_is_a else (x, w)
            A(f'v_mfma_f32_16x16x32_bf16 {d}, {a_}, {b_}, {"0" if ks == 0 else d}')
            if t == 0 and n < 26: S.emit((0, rd(n+2), f'x{n+2}')); S.g += 1
            elif t == ntile-1 and n < 27:
                S.gap(1); S.emit((0, f'L:x{n+1}'))
            else: S.gap()

def colsum(A, acc, ones, wf, ntile, w_is_a):
    for r in range(4): A(f'v_mov_b32 v{ones+r}, 0x3f803f80')
    for ks in range(14):
        for t in range(ntile):
            d = v(acc+4*t, 4); w = u(wf(t, ks), 4); x = v(ones, 4)
            a_, b_ = (w, x) if w_is_a else (x, w)
            A(f'v_mfma_f32_16x16x32_bf16 {d}, {a_}, {b_}, {"0" if ks == 0 else d}')

class Rec:
    def __init__(self): self.l = []
    def __call__(self, t): self.l += [x.strip() for x in t.strip().split('\n') if x.strip()]


NH = 18
def role_Y(A):
    late = Late()
    sH, sW0, sNX, sNS, sYo, sXSo, sEND, sINC, sPH, sA1, sL1, sI1, sZERO, sNSEG, sNLAY, sNEED, sXF = range(59, 76)
    vX, vS, vRW, vRR, vXR, vPR = 3, 4, 5, 6, 7, 14
    ACC, XF, STR, SO, CS, RS = 16, 72, 88, 104, 110, 88
    LR = 2*XBS
    A.label('L_roleY')
    tok_init(A); flag_lanes(A, vFLG, 14)
    A(f"""s_and_b32 s{sH}, s{sIDX}, 15
    s_lshr_b32 s40, s{sIDX}, 4
    s_mov_b32 s{sZERO}, 0
    s_mov_b32 s{sNLAY}, 0
    s_mov_b32 s{sEND}, {CFG['NH']}
    s_mov_b32 s{sINC}, 3
    s_mov_b32 s{sPH}, 0
    s_add_u32 s41, s40, 1
    s_cmp_eq_u32 s{sGRP}, 3
    s_cselect_b32 s{sNSEG}, 0, s41
    s_cselect_b32 s{sA1}, {CFG['NH']}, s40
    s_cselect_b32 s{sL1}, 0, 1
    s_cselect_b32 s{sI1}, 1, 2
    s_mul_i32 s{sW0}, s{sH}, 28
    s_mul_i32 s41, s{sWAVE}, 7
    s_add_u32 s{sW0}, s{sW0}, s41
    s_mul_i32 s{sW0}, s{sW0}, 14336
    s_lshl_b32 s40, s{sWAVE}, 8
    s_add_u32 s40, s40, {LR}
    v_and_b32 v7, 15, v0
    v_lshl_add_u32 v{vRW}, v7, 2, s40
    v_lshrrev_b32 v7, 5, v0
    v_lshl_add_u32 v{vRW}, v7, 7, v{vRW}
    v_lshrrev_b32 v7, 4, v0
    v_lshl_add_u32 v{vRR}, v7, 4, s40
    s_lshl2_add_u32 s40, s{sH}, s{sWAVE}
    s_min_u32 s40, s40, 27
    s_lshl_b32 s76, s40, 10
    s_cmp_ge_u32 s40, 14
    s_cselect_b64 s[78:79], -1, 0
    s_add_u32 s20, s76, {XS_OFF[0]}
    s_mul_i32 s21, s{sWAVE}, {7*16384}
    s_lshl_b32 s40, s{sH}, 10
    s_add_u32 s21, s21, s40
    s_add_u32 s21, s21, {Y_OFF[0]}
    s_mov_b32 s58, {LSY+12}""")
    def next_addr(A=A):
        A(f"""s_mul_i32 s{sNX}, s{sNLAY}, {X_OFF[2]-X_OFF[0]}
        s_mul_i32 s40, s{sNSEG}, {SEGX}
        s_add_u32 s{sNX}, s{sNX}, s40
        s_add_u32 s{sNX}, s{sNX}, {X_OFF[0]}
        s_mul_i32 s{sNS}, s{sNLAY}, {ST_OFF[2]-ST_OFF[0]}
        s_lshl_b32 s40, s{sNSEG}, 12
        s_add_u32 s{sNS}, s{sNS}, s40
        s_add_u32 s{sNS}, s{sNS}, {ST_OFF[0]}
        s_add_u32 s{sNEED}, s{sNLAY}, 1""")
        flag_addr(A, sNFA, F_X2, sNSEG, sZERO)
    next_addr()
    load_w7(A, lambda slot: (sW0, WB_OFF + slot*14336))
    colsum(A, ACC, XF, wfrag, 7, False)
    for t in range(7): A(f'v_mov_b32 v{CS+t}, v{ACC+4*t}')
    sync_init(A, 4)
    P = XPipe(A, late, sNX, sNS, sNEED, 16, vPR, vX, vS)
    A.label('LY_loop')
    rt(A, 0)
    P.top()
    rt(A, 1)
    if CFG.get('tprof'): A('s_memtime s[84:85]')
    B = Rec()
    B(f"""s_mov_b32 s{sSEG}, s{sNSEG}
    s_mov_b32 s{sLAY}, s{sNLAY}
    s_lshl_b32 s43, s{sLAY}, 6
    s_add_u32 s43, s43, s{sSEG}
    s_mul_i32 s{sXSo}, s43, {SEGX}
    s_add_u32 s{sXSo}, s{sXSo}, s20
    s_cmp_lt_u32 s{sH}, 7
    s_cselect_b32 s{sXSo}, s{sXSo}, {OOB}
    s_mul_i32 s{sYo}, s43, {SEGY}
    s_add_u32 s{sYo}, s{sYo}, s21""")
    set_pending(B, F_Y, sH, dst=77, pend=False)
    B(f"""s_add_u32 s{sXF}, s77, {flag_off(F_XS,0)-flag_off(F_Y,0)}
    s_cmp_lt_u32 s{sH}, 7
    s_cselect_b32 s{sXF}, s{sXF}, {OOB}
    s_add_u32 s{sNSEG}, s{sNSEG}, s{sINC}
    s_cmp_ge_u32 s{sNSEG}, s{sEND}
    s_cselect_b32 s42, 1, 0
    s_cselect_b32 s{sNSEG}, s{sA1}, s{sNSEG}
    s_cmp_lg_u32 s42, 0
    s_cselect_b32 s{sNLAY}, s{sL1}, s{sNLAY}
    s_cselect_b32 s{sINC}, s{sI1}, s{sINC}
    s_cmp_lg_u32 s42, 0
    s_cselect_b32 s{sEND}, 64, s{sEND}
    s_add_u32 s{sPH}, s{sPH}, s42""")
    next_addr(B)
    B(f"""s_cmp_ge_u32 s{sPH}, 2
    s_cselect_b32 s{sNEED}, 0, s{sNEED}""")
    R = Rec(); stats_final(R, STR, SO, 8, False)
    R(f'v_mul_f32 v{SO+4}, v{SO}, v{SO+2}')
    R(f'ds_write_b32 v{vRW}, v{SO}'); R(f'ds_write_b32 v{vRW}, v{SO+4} offset:64')
    for tt in range(2):
        R(f'ds_read_b128 {v(RS+8*tt,4)}, v{vRR} offset:{tt*128}'); R.l.append((0, f'ds_read_b128 {v(RS+8*tt+4,4)}, v{vRR} offset:{tt*128+64}', 'rs'))
    stats_spread(R, SO)
    R(f'v_cndmask_b32 v8, v{SO}, v{SO+1}, s[78:79]'); R(f'v_cndmask_b32 v9, v{SO+2}, v{SO+3}, s[78:79]')
    for d in range(4):
        R(f'v_lshlrev_b32 v10, 16, v{84+d}'); R(f'v_and_b32 v11, 0xffff0000, v{84+d}')
        R('v_sub_f32 v10, v10, v9'); R('v_sub_f32 v11, v11, v9'); R('v_cvt_pk_bf16_f32 v10, v10, v11')
        R('v_and_b32 v11, 0xffff0000, v10'); R('v_lshlrev_b32 v10, 16, v10')
        R('v_mul_f32 v10, v10, v8'); R('v_mul_f32 v11, v11, v8'); R(f'v_cvt_pk_bf16_f32 v{84+d}, v10, v11')
    A(f'v_add_u32 v{vXR}, s76, v{vX}')
    pre = P.stats_read(STR) + [(0, f'ds_read_b128 v[84:87], v{vXR}', 'st')]
    bulk = [(5, 'L:st')] + R.l + [(25, f'buffer_store_dwordx4 v[84:87], v{vL}, {WS}, s{sXSo} offen sc1', 'xs')]
    def epi(E, t, tt):
        a0 = ACC + 8*t + 4*tt
        for r in range(4): E(f'v_mul_f32 v{8+r}, v{RS+8*tt+4+r}, v{CS+t}')
        for r in range(4): E(f'v_fma_f32 v{a0+r}, v{a0+r}, v{RS+8*tt+r}, -v{8+r}')
        for d in range(2): E(f'v_cvt_pk_bf16_f32 v{ACC+8*t+2*tt+d}, v{a0+2*d}, v{a0+2*d+1}')
    E = Rec()
    for t in range(7): epi(E, t, 0)
    bulk += [(101, 'L:rs')] + E.l
    import copy
    gx = 185
    for dry in (1, 0):
        Q = copy.deepcopy(A) if dry else A
        ctl = P.control(CFG['yga'], CFG['ygp'], CFG['ygd'], 4, 13) + post_items(gx, 'xs', 58, sXF, 12)
        ctl.sort(key=lambda x: x[0])
        S = Sched(Q, [ctl, chunks(B.l), list(bulk)])
        kv_gemm(Q, ACC, XF, vX, wfrag, 7, False, S, pre)
        gx = S.when['xs'] + 45
    print('Y xs store at gap', S.when['xs'])
    assert S.left() == [0, 0, 0], S.left()
    rt(A, 3)
    if CFG.get('tprof'): A('s_memtime s[90:91]')
    for t in range(7):
        a0 = ACC + 8*t + 4
        for r in (0, 2): A(f'v_pk_mul_f32 {v(8+r,2)}, {v(RS+12+r,2)}, {v(CS+(t&6),2)} op_sel:[0,{t&1}] op_sel_hi:[1,{t&1}]')
        for r in (0, 2): A(f'v_pk_fma_f32 {v(a0+r,2)}, {v(a0+r,2)}, {v(RS+8+r,2)}, {v(8+r,2)} neg_lo:[0,0,1] neg_hi:[0,0,1]')
        for d in range(2): A(f'v_cvt_pk_bf16_f32 v{a0-2+d}, v{a0+2*d}, v{a0+2*d+1}')
        A(f'buffer_store_dwordx4 {v(a0-4,4)}, v{vL}, {WS}, s{sYo} offen sc1')
        A(f's_add_u32 s{sYo}, s{sYo}, 16384')
    P.set_top_wait(S.after('dma') + 7)
    rt(A, 4)
    A(f's_mov_b32 s{sPFA}, s77'); A(f's_mov_b32 s{sPEND}, 1'); A(f's_xor_b32 s{sFULL}, s{sFULL}, 16')
    TP(A)
    A(f's_cmp_lg_u32 s{sNEED}, 0'); A('s_cbranch_scc1 LY_loop')
    P.finish()
    A('s_branch L_done')
    late.emit()
wfrag7 = wfrag
def TP(A):
    rt_store(A)

def role_T(A):
    late = Late()
    sH, sT0, sT6, sNX, sNS, sK0, sK3, sXa, sXb, sMa, sMb, sPo, sPm, sZERO, sNEED, sXF, sXG, sLX, sNSEG = range(59, 78)
    vX, vS, vCS, vDN, vSW, vSR, vF7, vPR, vP2 = 3, 4, 5, 6, 7, 118, 119, 14, 13
    ACC, XF, STR, SO, TB = 16, 72, 88, 104, 72
    XSR, DN = 16, 44
    LC = 2*XBS; LX = LC + 2048; LS = LX + 32768
    A.label('L_roleT')
    tok_init(A); flag_lanes(A, vFLG, 14); flag_lanes(A, vF7, 7)
    A(f"""s_and_b32 s{sH}, s{sIDX}, 15
    s_lshr_b32 s{sNSEG}, s{sIDX}, 4
    s_lshr_b32 s{sLAY}, s{sGRP}, 2
    s_mov_b32 s{sZERO}, 0
    s_and_b32 s42, s{sWAVE}, 1
    s_mul_i32 s43, s{sWAVE}, 7
    s_mul_i32 s44, s{sH}, 28
    s_add_u32 s44, s44, s43
    s_add_u32 s{sT0}, s44, s42
    s_mul_i32 s{sT0}, s{sT0}, 14336
    s_mul_i32 s45, s42, 6
    s_sub_u32 s45, 6, s45
    s_add_u32 s{sT6}, s44, s45
    s_mul_i32 s{sT6}, s{sT6}, 14336
    s_add_u32 s{sK0}, s43, s42
    s_lshr_b32 s{sK0}, s{sK0}, 1
    s_add_u32 s{sK3}, s43, s45
    s_lshr_b32 s{sK3}, s{sK3}, 1
    s_lshl_b32 s78, s42, 3
    s_lshl_b32 s40, s{sWAVE}, 9
    s_add_u32 s40, s40, {LC}
    v_lshrrev_b32 v8, 4, v0
    v_lshl_add_u32 v{vCS}, v8, 4, s40
    v_lshlrev_b32 v{vDN}, 7, v8
    v_and_b32 v9, 7, v0
    v_lshl_add_u32 v{vDN}, v9, 4, v{vDN}
    s_mul_i32 s40, s{sWAVE}, 6144
    s_add_u32 s40, s40, {LS}
    v_add_u32 v{vSW}, s40, v{vL}
    s_mul_i32 s40, s42, 3072
    s_add_u32 s40, s40, {LS}
    v_add_u32 v{vSR}, s40, v{vL}
    s_lshl_b32 s{sLX}, s{sWAVE}, 13
    s_add_u32 s{sLX}, s{sLX}, {LX}
    v_and_b32 v9, 15, v0
    v_lshlrev_b32 v8, 2, v8
    v_sub_u32 v8, v9, v8""")
    for r in range(4): A(f'v_cmp_le_i32 s[{20+2*r}:{21+2*r}], {r}, v8')
    def next_addr(A=A):
        A(f"""s_mul_i32 s{sNX}, s{sLAY}, {X_OFF[2]-X_OFF[0]}
        s_mul_i32 s40, s{sNSEG}, {SEGX}
        s_add_u32 s{sNX}, s{sNX}, s40
        s_add_u32 s{sNX}, s{sNX}, {X_OFF[0]}
        s_mul_i32 s{sNS}, s{sLAY}, {ST_OFF[2]-ST_OFF[0]}
        s_lshl_b32 s40, s{sNSEG}, 12
        s_add_u32 s{sNS}, s{sNS}, s40
        s_add_u32 s{sNS}, s{sNS}, {ST_OFF[0]}
        s_add_u32 s{sNEED}, s{sLAY}, 1
        s_cmp_lt_u32 s{sNSEG}, 64
        s_cselect_b32 s{sNEED}, s{sNEED}, 0""")
        flag_addr(A, sNFA, F_X2, sNSEG, sZERO)
    next_addr()
    load_w7(A, lambda slot: (sT0, WA_OFF + slot*14336) if slot < 6 else (sT6, WA_OFF))
    colsum(A, ACC, XF, wfrag, 7, True)
    for t in range(7): A(f'ds_write_b128 v{vCS}, {v(ACC+4*t,4)} offset:{t*64}')
    A('s_waitcnt lgkmcnt(0)')
    sync_init(A, 2)
    P = XPipe(A, late, sNX, sNS, sNEED, 17, vPR, vX, vS)
    A.label('LT_loop')
    rt(A, 0)
    P.top()
    rt(A, 1)
    B = Rec()
    B(f"""s_mov_b32 s{sSEG}, s{sNSEG}
    s_add_u32 s{sNSEG}, s{sNSEG}, 2
    s_mul_i32 s46, s{sSEG}, {SEGX}
    s_mul_i32 s47, s{sLAY}, {XS_OFF[1]-XS_OFF[0]}
    s_add_u32 s47, s47, s46
    s_add_u32 s47, s47, {XS_OFF[0]}
    s_lshl_b32 s{sXa}, s{sK0}, 10
    s_add_u32 s{sXa}, s{sXa}, s47
    s_lshl_b32 s{sXb}, s{sK3}, 10
    s_add_u32 s{sXb}, s{sXb}, s47
    s_mul_i32 s47, s{sLAY}, {MEMG_OFF[1]-MEMG_OFF[0]}
    s_mul_i32 s46, s{sSEG}, {SEGM}
    s_add_u32 s47, s47, s46
    s_add_u32 s47, s47, {MEMG_OFF[0]}
    s_lshl_b32 s{sMa}, s{sK0}, 9
    s_add_u32 s{sMa}, s{sMa}, s47
    s_lshl_b32 s{sMb}, s{sK3}, 9
    s_add_u32 s{sMb}, s{sMb}, s47
    s_add_u32 s{sMb}, s{sMb}, s78
    s_mul_i32 s47, s{sLAY}, {PX_OFF[1]-PX_OFF[0]}
    s_mul_i32 s46, s{sSEG}, {SEGP}
    s_add_u32 s47, s47, s46
    s_mul_i32 s46, s{sWAVE}, 20480
    s_add_u32 s47, s47, s46
    s_add_u32 s47, s47, {PX_OFF[0]}
    s_lshl_b32 s{sPo}, s{sH}, 10
    s_add_u32 s{sPo}, s{sPo}, s47
    s_lshl_b32 s46, s{sH}, 8
    s_add_u32 s{sPm}, s47, s46
    s_add_u32 s{sPm}, s{sPm}, 16384""")
    next_addr(B)
    flag_addr(B, sXF, F_XS, sSEG)
    set_pending(B, F_P, sH, dst=79, pend=False)
    def xs_dma():
        for kt in range(2):
            A(f's_add_u32 s46, s{sXa}, {kt*14336}'); A(f's_add_u32 m0, s{sLX}, {kt*4096}')
            for p in range(3): A(f'buffer_load_dwordx4 v{vL}, {WS}, s46 offen offset:{p*1024} sc1 lds')
            A(f's_add_u32 s46, s{sXb}, {kt*14336}'); A(f's_add_u32 m0, s{sLX}, {kt*4096+3072}')
            A(f'buffer_load_dwordx4 v{vL}, {WS}, s46 offen sc1 lds')
        A(f's_mov_b32 s{sXG}, 1')
    gx = CFG['tgx']
    xc = [(gx-45, f'buffer_load_dword v{vP2}, v{vF7}, {WS}, s{sXF} offen sc1', 'xprobe'), (gx, 'W:xprobe'), (gx, f'v_cmp_ne_u32 vcc, 1, v{vP2}'),
          (gx+2, f's_cmp_eq_u64 vcc, 0\ns_cselect_b32 s{sXG}, 1, 0\ns_cselect_b32 s28, s{sXa}, {OOB}'),
          (gx+3, f's_cmp_lg_u32 s{sXG}, 0\ns_cselect_b32 s29, s{sXb}, {OOB}\ns_cselect_b32 s52, 8, 24'),
          (gx+4, f'v_add_u32 v{vP2}, s52, v{vSY}'), (gx+4, f'v_mov_b32 v12, s{sTASK}'), (gx+5, f'ds_write_b32 v{vP2}, v12')]
    g = gx + 7
    for kt in range(2):
        xc.append((g-1, f's_add_u32 s58, s28, {kt*14336}\ns_add_u32 m0, s{sLX}, {kt*4096}'))
        for p in range(3): xc.append((g, f'buffer_load_dwordx4 v{vL}, {WS}, s58 offen offset:{p*1024} sc1 lds')); g += 4
        xc.append((g-1, f's_add_u32 s58, s29, {kt*14336}\ns_add_u32 m0, s{sLX}, {kt*4096+3072}'))
        xc.append((g, f'buffer_load_dwordx4 v{vL}, {WS}, s58 offen sc1 lds')); g += 4
    assert g <= CFG['tgd'] + 5
    R = Rec(); stats_final(R, STR, SO, 8)
    tbo = (88, 72)
    def epi(E, tt):
        csr = lambda t: E(f'ds_read_b128 {v(110+4*(t&1),4)}, v{vCS} offset:{t*64}')
        csr(0)
        for t in range(7):
            c = 110 + 4*(t & 1)
            if t < 6: csr(t+1)
            E(f's_waitcnt lgkmcnt({1 if t < 6 else 0})')
            a0 = ACC + 4*(t*2+tt)
            for r in range(4): E(f'v_fma_f32 v{a0+r}, -v{SO+2+tt}, v{c+r}, v{a0+r}')
            o = tbo[tt] + 2*t
            E(f'v_cvt_pk_bf16_f32 v{o}, v{a0}, v{a0+1}'); E(f'v_cvt_pk_bf16_f32 v{o+1}, v{a0+2}, v{a0+3}')
    E = Rec(); epi(E, 0)
    e2 = [(101, '+0')]; k = 0; w = 0
    for x in E.l:
        if x.startswith('ds_read'): e2.append((0, x, f'cs{k}')); k += 1
        elif x.startswith('s_waitcnt'):
            if w == 0: e2.append('+5')
            e2.append(f'L:cs{w}'); w += 1
        else: e2.append(x)
    bulk = [(5, 'L:st')] + R.l + e2
    ctl = P.control(CFG['tga'], CFG['tgp'], CFG['tgd'], 4, 12) + xc
    ctl.sort(key=lambda x: x[0])
    S = Sched(A, [ctl, chunks(B.l), bulk])
    kv_gemm(A, ACC, XF, vX, wfrag, 7, True, S, P.stats_read(STR))
    assert S.left() == [0, 0, 0], S.left()
    P.set_top_wait(2)
    epi(A, 1)
    tb = lambda tt, p: tbo[tt] + 4*p
    rt(A, 2)
    lx = A.newlabel('Ltq')
    A(f's_cmp_lg_u32 s{sXG}, 0'); A(f's_cbranch_scc1 {lx}')
    block_flags(A, [(sXF, vF7)], 18, 8, 8)
    xs_dma()
    A.label(lx)
    dnl = [f'buffer_load_dwordx4 {v(DN+4*p,4)}, v{vDN}, {WS}, s{sMa} offen offset:{p*512} sc1' for p in range(3)] + \
          [f'buffer_load_dwordx2 {v(DN+12,2)}, v{vDN}, {WS}, s{sMb} offen sc1']
    for x in dnl: A(x)
    A(f'v_add_u32 v8, s{sLX}, v{vL}'); A(f'v_add_u32 v9, s78, v8')
    A(f's_cmp_eq_u32 s{sWAVE}, 0')
    A(f's_cselect_b64 s[42:43], -1, 0')
    A(f'v_cndmask_b32 v12, v{SO+1}, v{SO}, s[42:43]')
    A('s_waitcnt vmcnt(4)')
    for p in range(3):
        for kt in range(2): A(f'ds_read_b128 {v(XSR+8*p+4*kt,4)}, v8 offset:{kt*4096+p*1024}')
    for kt in range(2): A(f'ds_read_b64 {v(XSR+24+2*kt,2)}, v9 offset:{kt*4096+3072}')
    SX = {(0, 0): 60, (0, 1): 64, (1, 1): 68, (2, 0): 104, (2, 1): 108}
    def g2(p, kt, tt):
        d = v(SX[(kt, tt)], 4)
        if p < 3:
            ka = v(XSR+8*p+4*kt, 4) if kt < 2 else v(DN+4*p, 4)
            A(f'v_mfma_f32_16x16x32_bf16 {d}, {ka}, {v(tb(tt,p),4)}, {"0" if p == 0 else d}')
        else:
            ka = v(XSR+24+2*kt, 2) if kt < 2 else v(DN+12, 2)
            A(f'v_mfma_f32_16x16x16_bf16 {d}, {ka}, {v(tb(tt,3),2)}, {d}')
    for p in range(4):
        A(f's_waitcnt lgkmcnt({6-2*p})')
        for kt, tt in ((0, 0), (0, 1), (1, 1)): g2(p, kt, tt)
    for (kt, tt) in ((0, 0), (0, 1), (1, 1)): A(f'ds_write_b128 v{vSW}, {v(SX[(kt,tt)],4)} offset:{(tt*3+kt)*1024}')
    rt(A, 3)
    lm = A.newlabel('Ltm'); lm2 = A.newlabel('Ltm')
    A(f's_branch {lm2}')
    A.label(lm)
    A(f's_sleep {CFG["msleep"]}')
    P.retry()
    for x in dnl: A(x)
    timeout_check(A, 19)
    A.label(lm2)
    A('s_waitcnt vmcnt(0)')
    A(f'v_max3_u32 v8, v{DN}, v{DN+1}, v{DN+2}')
    for k in range(3, 13, 2): A(f'v_max3_u32 v8, v8, v{DN+k}, v{DN+k+1}')
    A(f'v_max_u32 v8, v8, v{DN+13}')
    A('v_cmp_eq_u32 vcc, -1, v8')
    A(f's_cbranch_vccnz {lm}')
    rt(A, 4)
    for p in range(4):
        for tt in range(2): g2(p, 2, tt)
    for tt in range(2): A(f'ds_write_b128 v{vSW}, {v(SX[(2,tt)],4)} offset:{(tt*3+2)*1024}')
    A('s_waitcnt lgkmcnt(0)'); A('s_barrier')
    A(f's_cmp_ge_u32 s{sWAVE}, 2'); A('s_cbranch_scc1 LT_post')
    S = 16
    for w in range(4):
        for k in range(3): A(f'ds_read_b128 {v(S+12*w+4*k,4)}, v{vSR} offset:{w*6144+k*1024}')
    A('v_mov_b32 v8, 0xf149f2ca')
    A(f'v_and_b32 v116, 0xf0, v{vL}'); A(f'v_bfe_u32 v117, v{vL}, 8, 1'); A('v_lshl_add_u32 v116, v117, 3, v116')
    A('s_waitcnt lgkmcnt(6)')
    for i in range(0, 12, 2): A(f'v_pk_add_f32 {v(S+i,2)}, {v(S+i,2)}, {v(S+12+i,2)}')
    A('s_waitcnt lgkmcnt(0)')
    for i in range(0, 12, 2): A(f'v_pk_add_f32 {v(S+24+i,2)}, {v(S+24+i,2)}, {v(S+36+i,2)}')
    for i in range(0, 12, 2): A(f'v_pk_add_f32 {v(S+i,2)}, {v(S+i,2)}, {v(S+24+i,2)}')
    for i in range(0, 12, 2): A(f'v_pk_mul_f32 {v(S+i,2)}, {v(S+i,2)}, v[12:13] op_sel_hi:[1,0]')
    A(f's_cmp_eq_u32 s{sWAVE}, 0')
    for r in range(4):
        A(f's_cselect_b64 s[42:43], s[{20+2*r}:{21+2*r}], -1'); A(f's_cselect_b64 s[44:45], 0, s[{20+2*r}:{21+2*r}]')
        A(f'v_cndmask_b32 v{S+r}, v8, v{S+r}, s[42:43]'); A(f'v_cndmask_b32 v{S+4+r}, v8, v{S+4+r}, s[44:45]')
    A(f'v_max3_f32 v9, v{S}, v{S+1}, v{S+2}'); A(f'v_max3_f32 v10, v{S+3}, v{S+4}, v{S+5}')
    A(f'v_max3_f32 v9, v9, v{S+6}, v{S+7}'); A(f'v_max3_f32 v10, v10, v{S+8}, v{S+9}')
    A(f'v_max3_f32 v9, v9, v{S+10}, v{S+11}'); A('v_max_f32 v9, v9, v10')
    red_g(A, [9], 10, 'v_max_f32')
    for k in range(12): A(f'v_sub_f32 v{S+k}, v{S+k}, v9')
    for k in range(12): A(f'v_exp_f32 v{S+k}, v{S+k}')
    A(f'v_pk_add_f32 v[8:9], {v(S+8,2)}, {v(S+10,2)}'); A(f'v_pk_add_f32 v[10:11], {v(S,2)}, {v(S+2,2)}')
    A(f'v_pk_add_f32 {v(S+12,2)}, {v(S+4,2)}, {v(S+6,2)}'); A(f'v_pk_add_f32 v[10:11], v[10:11], {v(S+12,2)}')
    A('v_add_f32 v8, v8, v9'); A('v_add_f32 v9, v10, v11'); A('v_fmac_f32 v9, 0.5, v8')
    red_g(A, [9], 10)
    A('v_rcp_f32 v8, v9')
    for i in range(0, 12, 2): A(f'v_pk_mul_f32 {v(S+i,2)}, {v(S+i,2)}, v[8:9] op_sel_hi:[1,0]')
    for k in range(6): A(f'v_cvt_pk_bf16_f32 v{110+k}, v{S+2*k}, v{S+2*k+1}')
    A(f'buffer_store_dwordx4 v[110:113], v{vL}, {WS}, s{sPo} offen sc1')
    A(f'buffer_store_dwordx2 v[114:115], v116, {WS}, s{sPm} offen sc1')
    A(f's_mov_b32 s{sPFA}, s79'); A(f's_mov_b32 s{sPEND}, 1'); A(f's_xor_b32 s{sFULL}, s{sFULL}, 16')
    A.label('LT_post')
    rt(A, 5); TP(A)
    A(f's_cmp_lg_u32 s{sNEED}, 0'); A('s_cbranch_scc1 LT_loop')
    P.finish()
    A('s_branch L_done')
    late.emit()

def finish_x(A, S, RES, t, st):
    for d in range(4):
        A(f'v_lshlrev_b32 v{t}, 16, v{RES+d}'); A(f'v_and_b32 v{t+1}, 0xffff0000, v{RES+d}')
        A(f'v_add_f32 v{t}, v{t}, v{S+2*d}'); A(f'v_add_f32 v{t+1}, v{t+1}, v{S+2*d+1}')
        A(f'v_cvt_pk_bf16_f32 v{st+d}, v{t}, v{t+1}')

def sum4(A, S, n):
    for i in range(0, n, 2):
        A(f'v_pk_add_f32 {v(S+i,2)}, {v(S+i,2)}, {v(S+n+i,2)}'); A(f'v_pk_add_f32 {v(S+2*n+i,2)}, {v(S+2*n+i,2)}, {v(S+3*n+i,2)}')
    for i in range(0, n, 2): A(f'v_pk_add_f32 {v(S+i,2)}, {v(S+i,2)}, {v(S+2*n+i,2)}')

def stat_off(A, dst, sks):
    A(f's_lshl_b32 s{dst}, s{sks}, 7')

def role_O(A):
    late = Late()
    sQ, sY, sZ, sP, sXi, sXo, sSo, sPa, sPb, sTEAM, sK, sTG, sNSEG, sNLAY, sNEED, sFY, sFZ, sFP, sGP = range(59, 78)
    cY, cZ, cPa, cPb, cX, cS = 20, 21, 22, 23, 24, 25
    vF1, vRW, vRR, vST = 3, 4, 5, 6
    ACC, YF, ZF, PF, RES, PR = 16, 48, 112, 144, 192, 196
    D = CFG['oD']
    A.label('L_roleO')
    A(f's_mov_b32 s{sTEAM}, s40'); A(f's_mov_b32 s{sQ}, s41')
    tok_init(A); flag_lanes(A, vFLG, 16); A(f'v_mov_b32 v{vF1}, 0')
    A(f"""s_lshl_b32 s{cY}, s{sQ}, 16
    s_lshl_b32 s40, s{sWAVE}, 12
    s_add_u32 s{cY}, s{cY}, s40
    s_add_u32 s{cY}, s{cY}, {Y_OFF[0]}
    s_add_u32 s{cPa}, s40, {PX_OFF[0]}
    s_lshl_b32 s{cZ}, s{sQ}, 14
    s_lshl_b32 s40, s{sWAVE}, 10
    s_add_u32 s{cZ}, s{cZ}, s40
    s_add_u32 s{cZ}, s{cZ}, {ZG_OFF[0]}
    s_add_u32 s{cPb}, s40, {PX_OFF[0]+16384}
    s_lshr_b32 s44, s{sWAVE}, 1
    s_and_b32 s45, s{sWAVE}, 1
    s_lshl1_add_u32 s46, s{sQ}, s44
    s_mul_i32 s40, s45, 14
    s_add_u32 s40, s40, s46
    s_lshl_b32 s40, s40, 10
    s_add_u32 s{cX}, s40, {X_OFF[0]}""")
    stat_off(A, cS, 46)
    A(f"""s_mul_i32 s41, s45, 1792
    s_add_u32 s{cS}, s{cS}, s41
    s_add_u32 s{cS}, s{cS}, {ST_OFF[1]}
    s_lshl_b32 s40, s{sWAVE}, 13
    v_add_u32 v{vRW}, s40, v{vL}
    s_lshl_b32 s40, s44, 12
    s_lshl_b32 s41, s45, 10
    s_add_u32 s40, s40, s41
    v_add_u32 v{vRR}, s40, v{vL}
    v_and_b32 v{vST}, 15, v0
    v_lshlrev_b32 v{vST}, 3, v{vST}
    s_mov_b32 s{sK}, 0
    s_mov_b32 s{sTG}, 1
    s_mov_b32 s{sGP}, 0
    s_mov_b32 s{sNEED}, 1
    s_cmp_eq_u32 s{sTEAM}, 2
    s_cselect_b32 s{sNSEG}, 2, 0
    s_cselect_b32 s{sNLAY}, 0, s{sTEAM}""")
    def nflags():
        flag_addr(A, sFY, F_Y, sNSEG, sNLAY)
        A(f's_add_u32 s{sFZ}, s{sFY}, {flag_off(F_Z,0)-flag_off(F_Y,0)}'); A(f's_add_u32 s{sFP}, s{sFY}, {flag_off(F_P,0)-flag_off(F_Y,0)}')
    nflags()
    sync_init(A, 4)
    sNY, sNXi = 26, 27
    def naddr():
        A(f"""s_lshl_b32 s40, s{sNLAY}, 6
        s_add_u32 s40, s40, s{sNSEG}
        s_mul_i32 s{sNY}, s40, {SEGY}
        s_add_u32 s{sNY}, s{sNY}, s{cY}
        s_lshl_b32 s40, s{sNLAY}, 7
        s_add_u32 s40, s40, s{sNSEG}
        s_mul_i32 s{sNXi}, s40, {SEGX}
        s_add_u32 s{sNXi}, s{sNXi}, s{cX}""")
    naddr()
    YS = [256, 320]; RS_ = [192, 200]
    def y_list(k, sy, sx):
        L = []
        for c in range(4):
            for hl in range(4):
                L.append((f's_add_u32 s43, s{sy}, {c*16384}\n' if hl == 0 else '') + f'buffer_load_dwordx4 {u(YS[k]+16*c+4*hl,4)}, v{vL}, {WS}, s43 offen offset:{hl*1024} sc1')
        L.append(f'buffer_load_dwordx4 {v(RS_[k],4)}, v{vL}, {WS}, s{sx} offen sc1')
        return L
    def y_loads(k):
        for x in y_list(k, sNY, sNXi): A(x)
    def look(pr, sg, pw, wait):
        y = A.newlabel('Loy'); n = A.newlabel('Lon'); o = A.newlabel('Loo')
        A(f's_cmp_{"eq" if pw else "lg"}_u32 s{sWAVE}, 3'); A(f's_cbranch_scc1 {o}')
        A.label(n)
        def out():
            A.label(o)
            A(f's_mov_b32 s{sg}, 0')
            pr.check(y, n, False, wait)
            A.label(y); A(f's_mov_b32 s{sg}, 1'); A(f's_branch {n}')
        late.add(out)
    sT1 = 28
    PY = Probe(A, late, [(sFY, vFLG)], 4, PR, stask=sT1)
    PP = Probe(A, late, [(sFZ, vF1), (sFP, vFLG)], 8, PR+1)
    for k in range(2):
        YFk, RESk = YS[k], RS_[k]
        A.label(f'LO_loop{k}')
        rt(A, 0)
        l1 = A.newlabel('Lo1'); l2 = A.newlabel('Lo2')
        A(f's_cmp_lg_u32 s{sGOT}, 0'); A(f's_cbranch_scc1 {l1}')
        block_flags(A, [(sFY, vFLG)], 20, 4, PR)
        y_loads(k)
        A.label(l1)
        rt(A, 1)
        A(f"""s_mov_b32 s{sSEG}, s{sNSEG}
        s_mov_b32 s{sLAY}, s{sNLAY}
        s_lshl_b32 s40, s{sLAY}, 6
        s_add_u32 s40, s40, s{sSEG}
        s_mul_i32 s{sZ}, s40, {SEGZ}
        s_add_u32 s{sZ}, s{sZ}, s{cZ}
        s_mul_i32 s41, s40, {SEGP}
        s_add_u32 s{sPa}, s41, s{cPa}
        s_add_u32 s{sPb}, s41, s{cPb}
        s_add_u32 s{sXo}, s{sNXi}, {X_OFF[1]-X_OFF[0]}
        s_lshl_b32 s40, s{sLAY}, 7
        s_add_u32 s40, s40, s{sSEG}
        s_lshl_b32 s{sSo}, s40, 12
        s_add_u32 s{sSo}, s{sSo}, s{cS}
        s_add_u32 s{sT1}, s{sTASK}, 1""")
        lt = A.newlabel('Lot'); ln = A.newlabel('Lon'); lu = A.newlabel('Lou'); lv = A.newlabel('Lov')
        A(f"""s_cmp_eq_u32 s{sTEAM}, 2
        s_cbranch_scc1 {lt}
        s_add_u32 s{sNSEG}, s{sNSEG}, s{sTG}
        s_xor_b32 s{sTG}, s{sTG}, 3
        s_cmp_lt_u32 s{sNSEG}, 64
        s_cselect_b32 s{sNEED}, 1, 0
        s_branch {ln}
        {lt}:
        s_cmp_lg_u32 s{sNLAY}, 0
        s_cbranch_scc1 {lu}
        s_cmp_ge_u32 s{sK}, {D}
        s_cbranch_scc1 {lv}
        {lu}:
        s_add_u32 s{sK}, s{sK}, 1
        s_cmp_gt_u32 s{sK}, 20
        s_cbranch_scc1 {lv}
        s_mov_b32 s{sNLAY}, 0
        s_mul_i32 s{sNSEG}, s{sK}, 3
        s_add_u32 s{sNSEG}, s{sNSEG}, 2
        s_branch {ln}
        {lv}:
        s_mov_b32 s{sNLAY}, 1
        s_sub_u32 s40, s{sK}, {D}
        s_mul_i32 s{sNSEG}, s40, 3
        s_add_u32 s{sNSEG}, s{sNSEG}, 2
        s_cmp_le_u32 s40, 20
        s_cselect_b32 s{sNEED}, 1, 0
        {ln}:""")
        naddr()
        flag_addr(A, sFY, F_Y, sNSEG, sNLAY)
        A(f's_cmp_lg_u32 s{sGP}, 0'); A(f's_cbranch_scc1 {l2}')
        block_flags(A, [(sFZ, vF1), (sFP, vFLG)], 21, 8, PR+1)
        A.label(l2)
        A(f'buffer_load_dword v{PR}, v{vFLG}, {WS}, s{sFY} offen sc1')
        rt(A, 2)
        for tt in range(2):
            A(f's_add_u32 s42, s{sPa}, {tt*20480}')
            for hl in range(4): A(f'buffer_load_dwordx4 {v(PF+24*tt+4*hl,4)}, v{vL}, {WS}, s42 offen offset:{hl*1024} sc1')
        for tt in range(2):
            A(f's_add_u32 s42, s{sPb}, {tt*20480}')
            A(f'buffer_load_dwordx4 {v(PF+24*tt+16,4)}, v{vL}, {WS}, s42 offen sc1')
        for c in range(4):
            A(f's_add_u32 s42, s{sZ}, {c*4096}')
            A(f'buffer_load_dwordx4 {v(ZF+4*c,4)}, v{vL}, {WS}, s42 offen sc1')
        A(f's_add_u32 s{sTASK}, s{sTASK}, 1')
        A(f's_add_u32 s{sFZ}, s{sFY}, {flag_off(F_Z,0)-flag_off(F_Y,0)}'); A(f's_add_u32 s{sFP}, s{sFY}, {flag_off(F_P,0)-flag_off(F_Y,0)}')
        A('s_waitcnt vmcnt(14)')
        A(f'v_cmp_ne_u32 vcc, 1, v{PR}')
        A(f's_cmp_eq_u64 vcc, 0'); A(f's_cselect_b32 s{sGOT}, s{sNEED}, 0'); A(f's_cmp_lg_u32 s{sGOT}, 0')
        A(f's_cselect_b32 s29, s{sNY}, {OOB}'); A(f's_cselect_b32 s30, s{sNXi}, {OOB}'); A('s_cselect_b32 s44, 4, 24')
        A(f'v_add_u32 v{PR}, s44, v{vSY}'); A(f'v_mov_b32 v{PR+1}, s{sTASK}'); A(f'ds_write_b32 v{PR}, v{PR+1}')
        yl = y_list(1-k, 29, 30); ny = [0]; nm = [0]
        def mf(x):
            A(x); nm[0] += 1
            if nm[0] >= CFG['oy0'] and nm[0] % CFG['oyp'] == 0 and yl: A(yl.pop(0)); ny[0] += 1
        n = 14
        for tt in range(2):
            for hl in range(4):
                n -= 1; A(f's_waitcnt vmcnt({n+ny[0]})')
                for c in range(4):
                    d = v(ACC+4*(c*2+tt), 4)
                    mf(f'v_mfma_f32_16x16x32_bf16 {d}, {u(YFk+16*c+4*hl,4)}, {v(PF+24*tt+4*hl,4)}, {"0" if hl == 0 else d}')
        for c in range(4):
            A(f's_waitcnt vmcnt({3-c+ny[0]})')
            for tt in range(2):
                d = v(ACC+4*(c*2+tt), 4)
                mf(f'v_mfma_f32_16x16x32_bf16 {d}, {v(ZF+4*c,4)}, {v(PF+24*tt+16,4)}, {d}')
            if c:
                for q in (2*c-2, 2*c-1): A(f'ds_write_b128 v{vRW}, {v(ACC+4*q,4)} offset:{q*1024}')
        rt(A, 3)
        for q in (6, 7): A(f'ds_write_b128 v{vRW}, {v(ACC+4*q,4)} offset:{q*1024}')
        for x in yl[:2]: A(x)
        A('s_waitcnt lgkmcnt(0)'); A('s_barrier')
        S = 16
        for w in range(4):
            for ab in range(2): A(f'ds_read_b128 {v(S+8*w+4*ab,4)}, v{vRR} offset:{w*8192+ab*2048}')
        for x in yl[2:]: A(x)
        A('s_waitcnt lgkmcnt(0)')
        sum4(A, S, 8)
        finish_x(A, S, RESk, 8, S+8)
        A(f'buffer_store_dwordx4 {v(S+8,4)}, v{vL}, {WS}, s{sXo} offen sc1')
        frag_stats(A, S+8, 8, 12)
        A(f'buffer_store_dwordx2 v[12:13], v{vST}, {WS}, s{sSo} offen sc1')
        rt(A, 4)
        PP.issue()
        set_pending(A, F_X1, sQ, pend=False)
        A(f's_cmp_eq_u32 s{sWAVE}, 0'); A(f's_cselect_b32 s{sPFA}, s{sPFA}, {OOB}')
        look(PP, sGP, True, 0)
        A('s_waitcnt vmcnt(0) lgkmcnt(0)'); A('s_barrier')
        A(f'buffer_store_dword v{vONE}, off, {WS}, s{sPFA} sc1')
        look(PP, sGP, False, 0)
        rt(A, 5)
        TP(A)
        A(f's_cmp_eq_u32 s{sNEED}, 0'); A('s_cbranch_scc1 L_done')
    A('s_branch LO_loop0')
    late.emit()

def role_F(A):
    late = Late()
    A.label('L_roleF')
    tok_init(A)
    A(f'''s_and_b32 s{sLAY}, s{sGRP}, 1
    s_mov_b32 s{sSEG}, 0
    s_load_dwordx4 s[44:47], s[0:1], 64
    s_load_dwordx4 s[48:51], s[0:1], 80
    s_waitcnt lgkmcnt(0)''')
    srd(A, 16, 44, 448*3584); srd(A, 20, 46, 448*3584); srd(A, 24, 48, 1792*896); srd(A, 28, 50, 2048*896)
    A(f's_cmp_ge_u32 s{sIDX}, 14'); A('s_cbranch_scc1 L_roleF2')
    sX, sST, sHo, sNEED, sNSEG = 59, 60, 61, 62, 63
    vSRC, vTR, vX, vS, vPR = 4, 5, 3, 6, 14
    ACC, XF, STR, SO, CS = 16, 48, 64, 80, 88
    wf = lambda t, ks: 256 + 4*(t*14+ks)
    flag_lanes(A, vFLG, 7)
    A(f'''v_lshrrev_b32 v6, 2, v0
    v_mul_u32_u24 v{vSRC}, 3584, v6
    v_and_b32 v7, 3, v0
    v_lshl_add_u32 v{vSRC}, v7, 4, v{vSRC}
    s_lshl2_add_u32 s44, s{sIDX}, s{sWAVE}
    s_lshl_b32 s45, s44, 6
    s_mul_i32 s46, s{sWAVE}, 28672
    v_lshrrev_b32 v6, 4, v0
    v_bfe_u32 v8, v0, 2, 2
    v_lshl_add_u32 v6, v6, 3, v8
    v_lshlrev_b32 v{vTR}, 6, v6
    v_lshl_add_u32 v{vTR}, v7, 4, v{vTR}
    v_add_u32 v{vTR}, s46, v{vTR}''')
    for mat in range(2):
        for n in range(28):
            A(f's_add_u32 s40, s45, {n*16*3584}'); A(f's_add_u32 m0, s46, {n*1024}')
            A(f'buffer_load_dwordx4 v{vSRC}, s[{16+4*mat}:{19+4*mat}], s40 offen lds')
        A('s_waitcnt vmcnt(0)')
        for ab in range(2):
            for ks in range(14):
                for hf in range(2):
                    A(f'ds_read_b64_tr_b16 {v(16+2*hf,2)}, v{vTR} offset:{ks*2048+hf*256+ab*8}')
                A('s_waitcnt lgkmcnt(0)')
                for r in range(4): A(f'v_accvgpr_write_b32 {u(wf(2*mat+ab, ks)+r)}, v{16+r}')
    colsum(A, CS, XF, wf, 4, True)
    lay_base(A, sX, (X_OFF[1], X_OFF[3])); lay_base(A, sST, (ST_OFF[1], ST_OFF[3])); lay_base(A, sHo, H_OFF)
    A(f's_lshl_b32 s40, s44, 10'); A(f's_add_u32 s{sHo}, s{sHo}, s40')
    A(f's_mov_b32 s{sNEED}, 2'); A(f's_mov_b32 s{sNSEG}, 0')
    flag_addr(A, sNFA, F_X1, sNSEG)
    sync_init(A, 4)
    P = XPipe(A, late, sX, sST, sNEED, 22, vPR, vX, vS)
    A.label('LF1_loop')
    rt(A, 0)
    P.top()
    rt(A, 1); rt(A, 2)
    B = Rec()
    B(f"""s_mov_b32 s{sSEG}, s{sNSEG}
    s_add_u32 s{sNSEG}, s{sNSEG}, 1
    s_add_u32 s{sX}, s{sX}, {SEGX}
    s_add_u32 s{sST}, s{sST}, {SEGS}
    s_cmp_lt_u32 s{sNSEG}, 64
    s_cselect_b32 s{sNEED}, 2, 0""")
    flag_addr(B, sNFA, F_X1, sNSEG)
    set_pending(B, F_H, sIDX, dst=64, pend=False)
    B(f's_add_u32 s65, s{sHo}, 57344')
    R = Rec(); stats_final(R, STR, SO, 8)
    def epi(E, tt):
        for ab in range(2):
            g0 = ACC + 4*(ab*2+tt); u0 = ACC + 4*((2+ab)*2+tt); T0 = 104 + 4*ab
            for r in range(4): E(f'v_fma_f32 v{g0+r}, -v{SO+2+tt}, v{CS+4*ab+r}, v{g0+r}')
            for r in range(4): E(f'v_mul_f32 v{T0+r}, v{112+2*tt}, v{g0+r}')
            for r in range(4): E(f'v_exp_f32 v{T0+r}, v{T0+r}')
            for r in range(4): E(f'v_fma_f32 v{u0+r}, -v{SO+2+tt}, v{CS+8+4*ab+r}, v{u0+r}')
            for r in range(4): E(f'v_add_f32 v{T0+r}, 1.0, v{T0+r}')
            for r in range(4): E(f'v_rcp_f32 v{T0+r}, v{T0+r}')
            for r in range(4): E(f'v_mul_f32 v{g0+r}, v{g0+r}, v{u0+r}')
            for r in range(4): E(f'v_mul_f32 v{g0+r}, v{113+2*tt}, v{g0+r}')
            for r in range(4): E(f'v_mul_f32 v{g0+r}, v{g0+r}, v{T0+r}')
            E(f'v_cvt_pk_bf16_f32 v{116+4*tt+2*ab}, v{g0}, v{g0+1}'); E(f'v_cvt_pk_bf16_f32 v{116+4*tt+2*ab+1}, v{g0+2}, v{g0+3}')
        E(f'buffer_store_dwordx4 {v(116+4*tt,4)}, v{vL}, {WS}, s{65 if tt else sHo} offen sc1')
    for tt in range(2):
        R(f'v_mul_f32 v{112+2*tt}, {f32(-1.4426950408889634)}, v{SO+tt}'); R(f'v_mul_f32 v{113+2*tt}, v{SO+tt}, v{SO+tt}')
    E = Rec(); epi(E, 0)
    bulk = [(5, 'L:st')] + R.l + [(59, E.l[0])] + E.l[1:]
    S = Sched(A, [P.control(CFG['fga'], CFG['fgp'], CFG['fgd'], 4, 13), chunks(B.l), bulk])
    kv_gemm(A, ACC, XF, vX, wf, 4, True, S, P.stats_read(STR))
    print('F1 left', S.left())
    assert S.left()[:2] == [0, 0], S.left()
    rt(A, 3)
    S.drain()
    epi(A, 1)
    P.set_top_wait(S.after('dma') + 1)
    rt(A, 4); rt(A, 5)
    A(f's_mov_b32 s{sPFA}, s64'); A(f's_mov_b32 s{sPEND}, 1'); A(f's_xor_b32 s{sFULL}, s{sFULL}, 16')
    TP(A)
    A(f's_add_u32 s{sHo}, s{sHo}, {SEGH}')
    A(f's_cmp_lg_u32 s{sNEED}, 0'); A('s_cbranch_scc1 LF1_loop')
    P.finish()
    A('s_branch L_done')
    late.emit()
    A.label('L_roleF2')
    sJ, sHi, sXi, sXo, sSo, sOut = range(59, 65)
    vRW, vRR, vST, vOUT = 6, 7, 3, 104
    HF, RES = 32, 96
    flag_lanes(A, vFLG, 14)
    A(f'''s_sub_u32 s{sJ}, s{sIDX}, 14
    s_cmp_ge_u32 s{sJ}, 7
    s_cselect_b32 s44, 1, 0
    s_mul_i32 s40, s44, 7
    s_sub_u32 s45, s{sJ}, s40
    v_lshrrev_b32 v8, 2, v0
    v_mul_u32_u24 v{vSRC}, 896, v8
    v_and_b32 v9, 3, v0
    v_lshl_add_u32 v{vSRC}, v9, 4, v{vSRC}
    s_mul_i32 s47, s{sWAVE}, {448*896}
    s_lshl_b32 s40, s45, 7
    s_add_u32 s47, s47, s40
    s_mul_i32 s46, s{sWAVE}, 28672
    v_lshrrev_b32 v10, 4, v0
    v_bfe_u32 v8, v0, 2, 2
    v_lshl_add_u32 v8, v10, 3, v8
    v_lshlrev_b32 v{vTR}, 6, v8
    v_lshl_add_u32 v{vTR}, v9, 4, v{vTR}
    v_add_u32 v{vTR}, s46, v{vTR}''')
    for half in range(2):
        for n in range(28):
            A(f's_add_u32 s40, s47, {n*16*896 + half*64}'); A(f's_add_u32 m0, s46, {n*1024}')
            A(f'buffer_load_dwordx4 v{vSRC}, s[24:27], s40 offen lds')
        A('s_waitcnt vmcnt(0)')
        for ab in range(2):
            for ks in range(14):
                for hf in range(2):
                    A(f'ds_read_b64_tr_b16 {v(16+2*hf,2)}, v{vTR} offset:{ks*2048+hf*256+ab*8}')
                A('s_waitcnt lgkmcnt(0)')
                for r in range(4): A(f'v_accvgpr_write_b32 {u(wf(2*half+ab, ks)+r)}, v{16+r}')
    lay_base(A, sHi, H_OFF); lay_base(A, sXi, (X_OFF[1], X_OFF[3]))
    A(f'''s_mul_i32 s40, s44, 57344
    s_add_u32 s{sHi}, s{sHi}, s40
    s_mul_i32 s40, s{sWAVE}, 14336
    s_add_u32 s{sHi}, s{sHi}, s40
    s_and_b32 s42, s{sWAVE}, 1
    s_lshl1_add_u32 s46, s45, s42
    s_mul_i32 s40, s44, 14
    s_add_u32 s40, s40, s46
    s_lshl_b32 s40, s40, 10
    s_add_u32 s{sXi}, s{sXi}, s40
    s_add_u32 s{sXo}, s40, {X_OFF[2]}
    s_mul_i32 s{sOut}, s44, 14336
    s_lshl_b32 s41, s46, 6
    s_add_u32 s{sOut}, s{sOut}, s41''')
    stat_off(A, sSo, 46)
    A(f'''s_mul_i32 s41, s44, 1792
    s_add_u32 s{sSo}, s{sSo}, s41
    s_add_u32 s{sSo}, s{sSo}, {ST_OFF[2]}
    s_lshl_b32 s40, s{sWAVE}, 12
    v_add_u32 v{vRW}, s40, v{vL}
    s_lshl_b32 s40, s42, 11
    v_add_u32 v{vRR}, s40, v{vL}
    v_and_b32 v8, 15, v0
    v_lshlrev_b32 v{vST}, 3, v8
    v_mul_u32_u24 v{vOUT}, 896, v8
    v_lshl_add_u32 v{vOUT}, v10, 4, v{vOUT}''')
    flag_addr(A, sNFA, F_H, sSEG)
    sync_init(A, 2)
    late = Late()
    PH = Probe(A, late, [(sNFA, vFLG)], 4, vPR)
    A.label('LF2_loop')
    rt(A, 0)
    l1 = A.newlabel('Lf2')
    A(f's_cmp_lg_u32 s{sGOT}, 0'); A(f's_cbranch_scc1 {l1}')
    block_flags(A, [(sNFA, vFLG)], 23, 4, vPR)
    A.label(l1)
    rt(A, 1); rt(A, 2)
    for k in range(14):
        if k % 4 == 0: A(f's_add_u32 s42, s{sHi}, {k*1024}')
        A(f'buffer_load_dwordx4 {v(HF+4*k,4)}, v{vL}, {WS}, s42 offen offset:{(k%4)*1024} sc1')
    A(f'buffer_load_dwordx4 {v(RES,4)}, v{vL}, {WS}, s{sXi} offen sc1')
    post_pending(A, vPR, 15)
    A(f's_add_u32 s{sTASK}, s{sTASK}, 1')
    A(f's_add_u32 s65, s{sSEG}, 1')
    flag_addr(A, sNFA, F_H, 65)
    for k in range(14):
        A(f's_waitcnt vmcnt({14-k})')
        if k == 13: PH.issue()
        for t in range(4):
            d = v(16+4*t, 4)
            A(f'v_mfma_f32_16x16x32_bf16 {d}, {u(wf(t,k),4)}, {v(HF+4*k,4)}, {"0" if k == 0 else d}')
    rt(A, 3)
    for t in range(4): A(f'ds_write_b128 v{vRW}, {v(16+4*t,4)} offset:{t*1024}')
    A('s_waitcnt lgkmcnt(0)'); A('s_barrier')
    A(f's_cmp_ge_u32 s{sWAVE}, 2'); A('s_cbranch_scc1 LF2_post')
    S = 32
    for w in range(4):
        for ab in range(2): A(f'ds_read_b128 {v(S+8*w+4*ab,4)}, v{vRR} offset:{w*4096+ab*1024}')
    A('s_waitcnt vmcnt(0) lgkmcnt(0)')
    sum4(A, S, 8)
    finish_x(A, S, RES, 8, 100)
    A(f's_cmp_eq_u32 s{sLAY}, 0'); A('s_cbranch_scc1 LF2_mid')
    A(f'buffer_store_dwordx4 v[100:103], v{vOUT}, s[28:31], s{sOut} offen')
    A('s_branch LF2_post2')
    A.label('LF2_mid')
    A(f'buffer_store_dwordx4 v[100:103], v{vL}, {WS}, s{sXo} offen sc1')
    frag_stats(A, 100, 8, 12)
    A(f'buffer_store_dwordx2 v[12:13], v{vST}, {WS}, s{sSo} offen sc1')
    set_pending(A, F_X2, sJ)
    A.label('LF2_post')
    A.label('LF2_post2')
    rt(A, 4); rt(A, 5)
    def look2(pw):
        y = A.newlabel('Loy'); n = A.newlabel('Lon'); o = A.newlabel('Loo')
        A(f's_cmp_{"eq" if pw else "lg"}_u32 s{sWAVE}, 3'); A(f's_cbranch_scc1 {o}')
        A.label(n)
        def out():
            A.label(o)
            A(f's_mov_b32 s{sGOT}, 0')
            PH.check(y, n, False, 0)
            A.label(y); A(f's_mov_b32 s{sGOT}, 1'); A(f's_branch {n}')
        late.add(out)
    look2(True)
    TP(A)
    A('s_waitcnt lgkmcnt(0)')
    A('s_barrier')
    look2(False)
    A(f'''s_add_u32 s{sHi}, s{sHi}, {SEGH}
    s_add_u32 s{sXi}, s{sXi}, {SEGX}
    s_add_u32 s{sXo}, s{sXo}, {SEGX}
    s_add_u32 s{sSo}, s{sSo}, {SEGS}
    s_add_u32 s{sOut}, s{sOut}, 28672
    s_add_u32 s{sSEG}, s{sSEG}, 1
    s_cmp_lt_u32 s{sSEG}, 64
    s_cbranch_scc1 LF2_loop''')
    post_pending(A, vPR)
    A('s_branch L_done')
    late.emit()
```

```python
KB = 1024
NSEG = 64
WA_OFF = 0
WB_OFF = WA_OFF + 16*28*14*KB
SEGX = 28*KB
X_OFF = [WB_OFF + 16*28*14*KB + i*NSEG*SEGX for i in range(4)]
XS_OFF = [X_OFF[3] + (i+1)*NSEG*SEGX for i in range(2)]
SEGY = 28*16*KB
Y_OFF = [XS_OFF[1] + NSEG*SEGX + i*NSEG*SEGY for i in range(2)]
SEGZ = 28*4*KB
ZG_OFF = [Y_OFF[1] + NSEG*SEGY + i*NSEG*SEGZ for i in range(2)]
SEGP = 40*KB
PX_OFF = [ZG_OFF[1] + NSEG*SEGZ + i*NSEG*SEGP for i in range(2)]
SEGH = 112*KB
H_OFF = [PX_OFF[1] + NSEG*SEGP + i*NSEG*SEGH for i in range(2)]
ARM_OFF = H_OFF[1] + NSEG*SEGH
R_SP, R_P = 0, 8*KB
SLOT = 20*KB
NSLOT = 8
RING_OFF = [ARM_OFF + i*NSLOT*SLOT for i in range(2)]
SEGM = 7*KB
MEMG_OFF = [RING_OFF[1] + NSLOT*SLOT + i*NSEG*SEGM for i in range(2)]
ARM_END = MEMG_OFF[1] + NSEG*SEGM
FLAG_OFF = ARM_END
F_Y, F_XS, F_Z, F_P, F_X1, F_H, F_X2 = range(7)
NKIND = 8
FLK = 8192
def flag_off(kind, layer): return FLAG_OFF + (kind*2 + layer)*FLK
PROG_OFF = [flag_off(7, 0), flag_off(7, 1)]
DUMMY_OFF = flag_off(7, 0) + 4096
FLAG_END = FLAG_OFF + NKIND*2*FLK
SEGS = 2*16*16*8
ST_OFF = [FLAG_END + i*NSEG*SEGS for i in range(4)]
PROF_OFF = ST_OFF[3] + NSEG*SEGS
WS_BYTES = 268435456
assert PROF_OFF + (16<<20) < WS_BYTES
def jmap(tile, i): return 32*(tile>>1) + 8*(i>>2) + 4*(tile&1) + (i&3)
if __name__ == '__main__':
    print(hex(PROF_OFF), PROF_OFF/1e6, ARM_END-ARM_OFF, FLAG_END-FLAG_OFF)
```

```python
import sys
from asmgen import *
from layout import *
import gen_chain
from gen_chain import *
from gen_prep import prep_kernel, PREP_LDS
from gen_tok import *
NAME = 'interleave_layers__memory_aug_recurrent_mem_tr__swiglu_ffn__prompt'
MAIN_LDS = 126976
HDR = open('cdna_kernels/' + NAME + '.s.ref').read().split('; Override launch')[0] if __name__ == '__main__' else ''
def build_all(prof=False, force_impure=False, **cfg):
    CFG.clear(); CFG.update(DEF); CFG.update(dict(dP=128)); CFG.update(cfg)
    A = Asm()
    A.raw(HDR.rstrip('\n')) if HDR else None
    A.raw(f'; @launch kernel=prep_kernel grid=(256,1,1) block=(256,1,1) lds={PREP_LDS}')
    A.raw(f'; @launch kernel=main_kernel grid=(256,1,1) block=(256,1,1) lds={MAIN_LDS}')
    A.raw('.amdgcn_target "amdgcn-amd-amdhsa--gfx950"\n.text')
    prep_kernel(A, 'prep_kernel')
    main_prologue(A, 'main_kernel')
    A(f'''s_cmp_ge_u32 s{sGRP}, 2
    s_cbranch_scc1 L_tok
    s_mov_b32 s101, s{sIDX}''')
    chain_dispatch(A, prof, force_impure)
    A.label('L_tok')
    A(f'''s_sub_u32 s42, s{sGRP}, 2
    s_cmp_ge_u32 s{sIDX}, 28
    s_cbranch_scc1 L_isO
    s_mov_b32 s101, s{sIDX}
    s_cmp_ge_u32 s{sGRP}, 6
    s_cbranch_scc1 L_roleF
    s_and_b32 s43, s{sIDX}, 3
    s_lshl2_add_u32 s43, s42, s43
    s_lshr_b32 s42, s{sIDX}, 2
    s_cmp_ge_u32 s42, 4
    s_cbranch_scc1 L_isY
    s_and_b32 s44, s42, 1
    s_lshl_b32 s44, s44, 4
    s_add_u32 s{sIDX}, s43, s44
    s_and_b32 s{sGRP}, s42, 2
    s_add_u32 s{sGRP}, s{sGRP}, 2
    s_mov_b32 s101, s{sIDX}
    s_branch L_roleT
    L_isO:
    s_lshl2_add_u32 s42, s42, s{sIDX}
    s_sub_u32 s42, s42, 28
    s_and_b32 s41, s42, 7
    s_lshr_b32 s40, s42, 3
    s_cmp_eq_u32 s41, 7
    s_cbranch_scc1 L_done
    s_mov_b32 s{sGRP}, 3
    s_mul_i32 s101, s40, 7
    s_add_u32 s101, s101, s41
    s_add_u32 s101, s101, 16
    s_min_u32 s101, s101, 31
    s_branch L_roleO
    L_isY:
    s_add_u32 s44, s43, 16
    s_cmp_eq_u32 s42, 6
    s_cselect_b32 s{sIDX}, s44, s43
    s_cmp_eq_u32 s42, 4
    s_cselect_b32 s{sGRP}, 3, 5
    s_mov_b32 s101, s{sIDX}''')
    role_Y(A)
    A.label('L_done'); A('s_endpgm')
    emit_timeouts(A, range(1, 24))
    role_T(A); role_O(A); role_F(A)
    A.raw('.section .rodata,"a"')
    A.raw(kernel_desc('prep_kernel', 256, 256)); A.raw(kernel_desc('main_kernel'))
    return A.text()
if __name__ == '__main__':
    open('cdna_kernels/' + NAME + '.s', 'w').write(build_all())
```
